```python
import torch

def _softmax(x, axis=-1):
    return torch.softmax(x, dim=axis)
def _gelu(x):
    return torch.nn.functional.gelu(x, approximate="tanh")
def _silu(x):
    return torch.nn.functional.silu(x)
def _sigmoid(x):
    return torch.sigmoid(x)
def _layernorm(x, axis=-1, eps=1e-5):
    m = x.mean(dim=axis, keepdim=True)
    v = x.var(dim=axis, keepdim=True, unbiased=False)
    return (x - m) / torch.sqrt(v + eps)
def _scatter_add(tgt, idx, src, axis=0):
    return tgt.clone().index_add_(axis, idx, src)
def _segment_sum(src, seg, n):
    out = torch.zeros((n,) + src.shape[1:], dtype=src.dtype)
    return out.index_add_(0, seg, src)
def _pad(x, pw):
    flat = tuple(v for pair in reversed(pw) for v in pair)
    return torch.nn.functional.pad(x, flat)

kernel_name = 'standalone__glu_gated_geglu__decode'

def setup_inputs():

    _w = (lambda a: (lambda t: t.to(torch.bfloat16) if t.is_floating_point() else t)(torch.as_tensor(a)))
    B, S, Dm, Df = 1, 1, 1024, 3584
    return {
        "x": _w((lambda *s: torch.randn(*s, dtype=torch.bfloat16) * 0.05)(B, S, Dm)),
        "w_gate": _w((lambda *s: torch.randn(*s, dtype=torch.bfloat16) * 0.05)(Dm, Df) * (Dm ** -0.5)),
        "w_up": _w((lambda *s: torch.randn(*s, dtype=torch.bfloat16) * 0.05)(Dm, Df) * (Dm ** -0.5)),
        "w_down": _w((lambda *s: torch.randn(*s, dtype=torch.bfloat16) * 0.05)(Df, Dm) * (Df ** -0.5)),
    }

def reference(x, w_gate, w_up, w_down):
    g = torch.einsum("bsd,df->bsf", x, w_gate)
    u = torch.einsum("bsd,df->bsf", x, w_up)
    h = _gelu(g) * u
    return torch.einsum("bsf,fd->bsd", h, w_down)
```

```python
import sys, argparse, math, struct
f2u = lambda f: struct.unpack("<I", struct.pack("<f", f))[0]

def gen(stamps=0, name="standalone__glu_gated_geglu__decode_kernel", dly=6, fmt1=4, fmt2=4, b15=0, cmap=0, K1=1, K2=1, st1=2, st2=2, b3=0, loc2=1, NA=300, warm2=1, rep1=1, b1=16, ush=0, ksh=0):
    D, DF = 1024, 3584
    N, T = 224, 512
    S1 = 128*fmt1; S2 = 128*fmt2
    EPO = 0; MB2 = 4096; MB2B = MB2 + 224*S2; MB1 = MB2B + 224*S2; C1 = 224*2*S1; WSB = MB1 + rep1*C1
    assert WSB <= (2 << 20)
    STO = 2 << 20
    o = []; A = o.append
    A(f"; @launch grid=({N},1,1) block=({T},1,1) lds=256")
    A('.amdgcn_target "amdgcn-amd-amdhsa--gfx950"')
    A(".text"); A(f".globl {name}"); A(".p2align 8"); A(f".type {name},@function"); A(f"{name}:")
    A(f"  s_cmp_ge_u32 s2, {N}")
    A("  s_cbranch_scc1 L_end")
    for i, r in [(0,4),(1,8),(2,12),(3,16),(4,20),(6,28)]:
        A(f"  s_load_dwordx2 s[{r}:{r+1}], s[0:1], {i*8}")
    def stamp(i):
        if stamps: A(f"  s_memrealtime s[{64+2*i}:{65+2*i}]")
    if stamps:
        for i in range(16): A(f"  s_mov_b32 s{64+i}, 0")
    stamp(0)
    for r, sz in [(4,2048),(8,D*DF*2),(12,D*DF*2),(16,D*DF*2),(20,2048),(28,(STO + (1<<20)) if stamps else WSB)]:
        A(f"  s_mov_b32 s{r+2}, {sz}")
        A(f"  s_mov_b32 s{r+3}, 0x00020000")
    A("  v_readfirstlane_b32 s32, v0")
    A("  v_and_b32 v1, 63, v0")
    if cmap == 0:
        A("  s_and_b32 s34, s2, 7")
        A("  s_lshr_b32 s33, s2, 3")
    else:
        A(f"  s_mov_b32 s35, {(1<<32)//28+1}")
        A("  s_mul_hi_u32 s34, s2, s35")
        A("  s_mul_i32 s35, s34, 28")
        A("  s_sub_u32 s33, s2, s35")
    A("  s_lshr_b32 s32, s32, 6")
    A("  s_mov_b32 s41, 0x05040100")
    A("  s_mov_b32 s42, 0x07060302")
    A("  s_and_b32 s36, s32, 3")
    A("  v_bfe_u32 v6, v1, 4, 1")
    A("  v_lshrrev_b32 v7, 5, v1")
    ACC = 16; R = 24
    for t in range(8): A(f"  v_mov_b32 v{ACC+t}, 0")
    A("  s_cmp_ge_u32 s32, 4")
    A("  s_cbranch_scc1 L_p2")

    def mktag():
        A("  s_add_u32 s40, s40, 1")
        A("  s_and_b32 s56, s40, 0x3ff")
        A("  s_mov_b32 s57, 0xfffffc00")
        A(f"  v_mov_b32 v{R+1}, s40")
        A(f"  v_mov_b32 v{R+3}, s40")
        A(f"  v_mov_b32 v{R+4}, s56")

    def reduce_publish(fmt, dpps, vaddr, soff):
        A("  s_nop 0")
        for t in range(4): A(f"  v_permlane32_swap_b32 v{ACC+t}, v{ACC+4+t}")
        for t in range(4): A(f"  v_add_f32 v{ACC+t}, v{ACC+t}, v{ACC+4+t}")
        m16 = (1 << min(dpps)) - 1
        m = m16 | (m16 << 16)
        A(f"  s_mov_b32 s62, {m:#x}")
        for t in range(2): A(f"  v_permlane16_swap_b32 v{ACC+t}, v{ACC+2+t}")
        for t in range(2): A(f"  v_add_f32 v{ACC+t}, v{ACC+t}, v{ACC+2+t}")
        for n, rot in enumerate(dpps):
            last = n == len(dpps) - 1
            A(f"  s_mov_b32 s63, {m:#x}" if n == 0 else "  s_nop 0")
            for t in range(2):
                dst = (R + 2*t) if (last and fmt == 8) else ACC + t
                A(f"  v_add_f32_dpp v{dst}, v{ACC+t}, v{ACC+t} row_ror:{rot} row_mask:0xf bank_mask:0xf")
        A("  s_mov_b64 exec, s[62:63]")
        if fmt == 8:
            for so, pol in soff: A(f"  buffer_store_dwordx4 v[{R}:{R+3}], {vaddr}, s[28:31], {so} offen{pol}")
        else:
            for t in range(2): A(f"  v_add_u32 v{ACC+t}, 0x200, v{ACC+t}")
            for t in range(2): A(f"  v_and_or_b32 v{ACC+t}, v{ACC+t}, s57, v{R+4}")
            for so, pol in soff: A(f"  buffer_store_dwordx2 v[{ACC}:{ACC+1}], {vaddr}, s[28:31], {so} offen{pol}")
        A("  s_mov_b64 exec, -1")

    def pub_lane_off(dst, creg, fmt):
        sh = 3 if fmt == 8 else 2
        A(f"  v_lshlrev_b32 {dst}, {3+sh}, {creg}")
        A(f"  v_lshl_add_u32 {dst}, v7, {2+sh}, {dst}")
        A(f"  v_lshl_add_u32 {dst}, v6, {1+sh}, {dst}")

    def poll(tag, fmt, loads, vaddr, K, stag, SET0, FIN, mask0, cnt, adv=()):
        NLd = len(loads)
        A(f"  s_mov_b32 s60, {mask0 & 0xffffffff:#x}")
        A(f"  s_mov_b32 s61, {mask0 >> 32:#x}")
        A("  s_mov_b32 s59, 0")
        A("  s_mov_b64 exec, s[60:61]")
        def issue(s):
            for t, (so, off) in enumerate(loads):
                r = SET0 + 4*(s*NLd + t)
                A(f"  buffer_load_dwordx4 v[{r}:{r+3}], {vaddr}, s[28:31], {so} offen offset:{off} sc1")
        for s in range(K-1):
            issue(s)
            if stag: A(f"  s_sleep {stag}")
        A(f"L_poll{tag}:")
        for s in range(K):
            issue((s + K - 1) % K)
            A(f"  s_waitcnt vmcnt({(K-1)*NLd})")
            if fmt == 4:
                for t in range(NLd):
                    r = SET0 + 4*(s*NLd + t)
                    for q in range(4): A(f"  v_xor_b32 v{FIN+4*t+q}, s56, v{r+q}")
                regs = [FIN + q for q in range(4*NLd)]
                A(f"  v_or3_b32 v15, v{regs[0]}, v{regs[1]}, v{regs[2]}")
                i = 3
                while i < len(regs):
                    if i + 1 < len(regs): A(f"  v_or3_b32 v15, v15, v{regs[i]}, v{regs[i+1]}"); i += 2
                    else: A(f"  v_or_b32 v15, v15, v{regs[i]}"); i += 1
                A("  v_and_b32 v15, 0x3ff, v15")
                A("  v_cmp_ne_u32 vcc, 0, v15")
            else:
                for t in range(NLd):
                    r = SET0 + 4*(s*NLd + t)
                    A(f"  v_mov_b32 v{FIN+2*t}, v{r}")
                    A(f"  v_mov_b32 v{FIN+2*t+1}, v{r+2}")
                    A(f"  v_xor_b32 v{r+1}, s40, v{r+1}")
                    A(f"  v_xor_b32 v{r+3}, s40, v{r+3}")
                    if t == 0: A(f"  v_or_b32 v15, v{r+1}, v{r+3}")
                    else: A(f"  v_or3_b32 v15, v15, v{r+1}, v{r+3}")
                A("  v_cmp_ne_u32 vcc, 0, v15")
            A("  s_add_u32 s59, s59, 1")
            A("  s_and_b64 exec, vcc, vcc")
            A(f"  s_cbranch_scc0 L_got{tag}")
        for (cmpop, count, sregs, delta) in adv:
            A(f"  s_cmp_{cmpop}_u32 s59, {count}")
            A(f"  s_cselect_b32 s58, {delta}, 0")
            for sr in sregs: A(f"  s_add_u32 {sr}, {sr}, s58")
        A("  s_cmp_lt_u32 s59, 0x400000")
        A(f"  s_cbranch_scc1 L_poll{tag}")
        A(f"L_got{tag}:")
        A("  s_mov_b64 exec, -1")
        if stamps: A(f"  s_mov_b32 {cnt}, s59")

    W0 = 48; XR = 40; TP = 32
    A("  s_mov_b32 s54, s33")
    if ush:
        A("  s_cmp_ge_u32 s36, 2")
        A(f"  s_cselect_b32 s55, {ush}, 0")
        A("  s_add_u32 s54, s54, s55")
    if ksh:
        A(f"  s_mul_i32 s55, s34, {ksh}")
        A("  s_add_u32 s54, s54, s55")
    if ush or ksh:
        A("  s_cmp_ge_u32 s54, 28")
        A("  s_cselect_b32 s55, 28, 0")
        A("  s_sub_u32 s54, s54, s55")
    A(f"  s_mul_i32 s37, s34, {128*7168}")
    A("  s_lshl_b32 s38, s54, 8")
    A("  s_add_u32 s37, s37, s38")
    A("  s_and_b32 s38, s36, 1")
    A("  s_lshl_b32 s39, s38, 7")
    A("  s_add_u32 s37, s37, s39")
    A("  v_lshrrev_b32 v3, 3, v1")
    A("  v_and_b32 v4, 7, v1")
    A(f"  v_mul_u32_u24 v2, {16*7168}, v3")
    A("  v_lshl_add_u32 v2, v4, 4, v2")
    A("  v_lshlrev_b32 v3, 5, v3")
    A("  s_lshl_b32 s43, s34, 8")
    A("  s_cmp_ge_u32 s36, 2")
    A("  s_waitcnt lgkmcnt(0)")
    A("  s_cselect_b32 s8, s12, s8")
    A("  s_cselect_b32 s9, s13, s9")
    A(f"  buffer_load_dwordx4 v[{XR}:{XR+3}], v3, s[4:7], s43 offen")
    A(f"  buffer_load_dwordx4 v[{XR+4}:{XR+7}], v3, s[4:7], s43 offen offset:16")
    for i in range(16):
        A(f"  buffer_load_dwordx4 v[{W0+4*i}:{W0+4*i+3}], v2, s[8:11], s37 offen")
        if i < 15: A("  s_add_u32 s37, s37, 7168")
        if i == 0: A(f"  s_load_dword s40, s[28:29], {EPO}")
    stamp(1)
    A("  s_waitcnt lgkmcnt(0)")
    if b1 >= 16: A("  s_barrier")
    pub_lane_off("v4", "v4", fmt1)
    A(f"  s_mul_i32 s44, s33, {16*S1}")
    A(f"  s_add_u32 s44, s44, {MB1}")
    A(f"  s_mul_i32 s45, s34, {2*S1}")
    A(f"  s_mul_i32 s55, s54, {16*S1}")
    A(f"  s_add_u32 s55, s55, {MB1}")
    A("  s_add_u32 s45, s45, s55")
    A(f"  s_mul_i32 s46, s36, {S1//2}")
    A("  s_add_u32 s45, s45, s46")
    for r in range(1, rep1): A(f"  s_add_u32 s{82+r}, s45, {r*C1}")
    if fmt1 == 8:
        A("  v_lshrrev_b32 v5, 4, v1")
        A(f"  v_mul_u32_u24 v5, {2*S1}, v5")
        A("  v_and_b32 v12, 15, v1")
        A("  v_lshl_add_u32 v5, v12, 4, v5")
        A(f"  s_mul_i32 s46, s36, {S1//4}")
        A("  s_add_u32 s46, s46, s44")
        A(f"  s_add_u32 s47, s46, {8*S1}")
        glds = [("s46", 0), ("s47", 0), ("s46", S1), ("s47", S1)]
        A("  v_lshl_add_u32 v12, v12, 1, v7")
    else:
        A("  v_lshrrev_b32 v5, 3, v1")
        A(f"  v_mul_u32_u24 v5, {2*S1}, v5")
        A("  v_and_b32 v12, 7, v1")
        A("  v_lshl_add_u32 v5, v12, 4, v5")
        A(f"  s_mul_i32 s46, s36, {S1//4}")
        A("  s_add_u32 s46, s46, s44")
        glds = [("s46", 0), ("s46", S1)]
        A("  v_lshl_add_u32 v12, v12, 1, v7")
        A("  v_lshl_add_u32 v12, v12, 1, v6")
    A("  s_lshl_b32 s48, s36, 5")
    A("  v_add_lshl_u32 v12, v12, s48, 1")
    G = 4 if fmt2 == 8 else 8
    NCW = D // G
    gpk = 128 // G
    def cons_addr():
        A("  s_mul_i32 s50, s36, 28")
        A("  s_add_u32 s50, s50, s33")
        A(f"  s_mul_i32 s39, s34, {gpk}")
        A("  s_add_u32 s39, s39, s50")
        A(f"  s_mul_i32 s49, s34, {28*S2}")
        A("  s_lshl_b32 s51, s50, 5")
        A("  s_add_u32 s49, s49, s51")
        A(f"  s_add_u32 s49, s49, {MB2 if loc2 else MB2B}")
    cons_addr()
    A("  v_lshrrev_b32 v13, 1, v1")
    A("  v_and_b32 v14, 1, v1")
    A(f"  v_mul_u32_u24 v13, {S2}, v13")
    A("  v_lshl_add_u32 v13, v14, 4, v13")
    A("  v_lshl_add_u32 v14, v14, 1, v7")
    if fmt2 == 4: A("  v_lshl_add_u32 v14, v14, 1, v6")
    A("  v_lshlrev_b32 v14, 1, v14")
    A(f"  s_mul_i32 s48, s39, {G*2}")
    for q in range(4): A(f"  v_mov_b32 v{8+q}, 0")
    mktag()
    for p in range(8):
        A(f"  s_waitcnt vmcnt({14-2*p})")
        if b1 == 14-2*p: A("  s_barrier")
        a, b = W0 + 8*p, W0 + 8*p + 4
        for q in range(4):
            A(f"  v_perm_b32 v{TP+2*q}, v{b+q}, v{a+q}, s41")
            A(f"  v_perm_b32 v{TP+2*q+1}, v{b+q}, v{a+q}, s42")
        for t in range(8):
            A(f"  v_dot2c_f32_bf16 v{ACC+t}, v{TP+t}, v{XR+p}")
    stamp(2)
    reduce_publish(fmt1, [8], "v4", [(f"s{45 if r == 0 else 82+r}", " sc1") for r in range(rep1)])
    A("  s_barrier")
    X0 = 32
    adv1 = [("lt", rep1, sorted(set(g[0] for g in glds)), C1)] if rep1 > 1 else []
    assert rep1 == 1 or K1 == 1
    poll(1, fmt1, glds, "v5", K1, st1, 48, X0, (1 << 64) - 1, "s78", adv1)
    stamp(3)
    if fmt1 == 8:
        A(f"  v_add_f32 v16, v{X0}, v{X0+2}")
        A(f"  v_add_f32 v17, v{X0+1}, v{X0+3}")
        A(f"  v_add_f32 v18, v{X0+4}, v{X0+6}")
        A(f"  v_add_f32 v19, v{X0+5}, v{X0+7}")
        A("  s_nop 0")
        A("  v_permlane32_swap_b32 v16, v17")
        A("  v_permlane32_swap_b32 v18, v19")
        A("  v_add_f32 v16, v16, v17")
        A("  v_add_f32 v18, v18, v19")
        A("  v_mov_b32 v17, v16")
        A("  v_mov_b32 v19, v18")
        A("  s_nop 0")
        A("  v_permlane16_swap_b32 v16, v17")
        A("  v_permlane16_swap_b32 v18, v19")
        A("  v_add_f32 v16, v16, v17")
        A("  v_add_f32 v18, v18, v19")
    else:
        g, u = X0, X0 + 4
        for b in (g, u):
            for q in range(2): A(f"  v_permlane32_swap_b32 v{b+q}, v{b+q+2}")
        for b in (g, u):
            for q in range(2): A(f"  v_add_f32 v{b+q}, v{b+q}, v{b+q+2}")
        A("  s_nop 0")
        for b in (g, u): A(f"  v_permlane16_swap_b32 v{b}, v{b+1}")
        for b in (g, u): A(f"  v_add_f32 v{b}, v{b}, v{b+1}")
        A("  s_nop 0")
        A(f"  v_add_f32_dpp v16, v{g}, v{g} row_ror:8 row_mask:0xf bank_mask:0xf")
        A(f"  v_add_f32_dpp v18, v{u}, v{u} row_ror:8 row_mask:0xf bank_mask:0xf")
    A("  v_cvt_pk_bf16_f32 v16, v16, v18")
    c1 = -2.0 * math.log2(math.e) * math.sqrt(2.0 / math.pi); c2 = c1 * 0.044715
    A("  v_lshlrev_b32 v20, 16, v16")
    A("  v_and_b32 v18, 0xffff0000, v16")
    A("  v_mul_f32 v15, v20, v20")
    A(f"  v_mov_b32 v16, {f2u(c1):#x}")
    A(f"  v_fmac_f32 v16, {f2u(c2):#x}, v15")
    A("  v_mul_f32 v16, v16, v20")
    A("  v_exp_f32 v16, v16")
    A("  s_nop 0")
    A("  v_add_f32 v16, 1.0, v16")
    A("  v_rcp_f32 v16, v16")
    A("  s_nop 0")
    A("  v_mul_f32 v16, v16, v20")
    A("  v_cvt_pk_bf16_f32 v16, v16, v16")
    A("  v_lshlrev_b32 v16, 16, v16")
    A("  v_mul_f32 v16, v16, v18")
    A("  v_cvt_pk_bf16_f32 v16, v16, v16")
    A("  ds_write_b16 v12, v16")
    A("  s_waitcnt lgkmcnt(0)")
    A("  s_barrier")
    stamp(4)
    if b3: A("  s_barrier")
    A(f"  s_cmp_ge_u32 s50, {gpk}")
    A("  s_cbranch_scc1 L_fin")
    Y0 = 8
    adv2 = [("eq", NA // K2 * K2, ["s49"], MB2B - MB2)] if loc2 else []
    poll(2, fmt2, [("s49", 0)], "v13", K2, st2, 48, Y0, (1 << 56) - 1, "s79", adv2)
    stamp(5)
    if fmt2 == 8:
        A(f"  v_permlane32_swap_b32 v{Y0}, v{Y0+1}")
        A(f"  v_add_f32 v{Y0}, v{Y0}, v{Y0+1}")
        A(f"  v_mov_b32 v{Y0+1}, v{Y0}")
        A("  s_nop 1")
        A(f"  v_permlane16_swap_b32 v{Y0}, v{Y0+1}")
        A(f"  v_add_f32 v{Y0}, v{Y0}, v{Y0+1}")
        sm = 3
    else:
        for q in range(2): A(f"  v_permlane32_swap_b32 v{Y0+q}, v{Y0+q+2}")
        for q in range(2): A(f"  v_add_f32 v{Y0+q}, v{Y0+q}, v{Y0+q+2}")
        A("  s_nop 1")
        A(f"  v_permlane16_swap_b32 v{Y0}, v{Y0+1}")
        A(f"  v_add_f32 v{Y0}, v{Y0}, v{Y0+1}")
        sm = 0x00030003
    for rot in (8, 4, 2):
        A("  s_nop 1")
        A(f"  v_add_f32_dpp v{Y0}, v{Y0}, v{Y0} row_ror:{rot} row_mask:0xf bank_mask:0xf")
    A(f"  s_mov_b32 exec_lo, {sm:#x}")
    A(f"  s_mov_b32 exec_hi, {sm:#x}")
    A(f"  v_cvt_pk_bf16_f32 v15, v{Y0}, v{Y0}")
    A("  buffer_store_short v15, v14, s[20:23], s48 offen")
    A("  s_mov_b64 exec, -1")
    A("  s_cmp_lg_u32 s39, 0")
    A("  s_cbranch_scc1 L_fin")
    A(f"  v_mov_b32 v14, {EPO}")
    A("  s_mov_b64 exec, 1")
    A(f"  buffer_store_dword v{R+1}, v14, s[28:31], 0 offen sc1")
    A("  s_mov_b64 exec, -1")
    A("  s_branch L_fin")
    A("L_p2:")
    WD = 48; PP = 80; H = 40
    A(f"  s_mul_i32 s37, s33, {128*2048}")
    A("  s_lshl_b32 s38, s34, 8")
    A("  s_add_u32 s37, s37, s38")
    A("  s_lshl_b32 s38, s36, 6")
    A("  s_add_u32 s37, s37, s38")
    A("  v_lshrrev_b32 v3, 2, v1")
    A("  v_and_b32 v4, 3, v1")
    A("  v_lshlrev_b32 v2, 14, v3")
    A("  v_lshl_add_u32 v2, v4, 4, v2")
    A("  v_lshlrev_b32 v3, 4, v3")
    pub_lane_off("v4", "v4", fmt2)
    A("  s_mul_i32 s52, s34, 28")
    A("  s_add_u32 s52, s52, s33")
    A(f"  s_mul_i32 s52, s52, {S2}")
    A(f"  s_mul_i32 s46, s36, {S2//4}")
    A("  s_add_u32 s52, s52, s46")
    A(f"  s_add_u32 s53, s52, {MB2B}")
    A(f"  s_add_u32 s52, s52, {MB2}")
    A("  s_waitcnt lgkmcnt(0)")
    A(f"  s_load_dword s40, s[28:29], {EPO}")
    if loc2 and warm2:
        A(f"  buffer_load_dword v{PP}, v4, s[28:31], s52 offen sc1")
    A("  s_waitcnt lgkmcnt(0)")
    A("  s_barrier")
    for i in range(8):
        A(f"  buffer_load_dwordx4 v[{WD+4*i}:{WD+4*i+3}], v2, s[16:19], s37 offen offset:{(i&1)*2048}")
        if i & 1 and i < 7: A("  s_add_u32 s37, s37, 4096")
    stamp(1)
    mktag()
    for p in range(4):
        A(f"  s_waitcnt vmcnt({6-2*p})")
        if 6-2*p == b15: A("  s_barrier")
        a, b = WD + 8*p, WD + 8*p + 4
        for q in range(4):
            A(f"  v_perm_b32 v{PP+8*p+2*q}, v{b+q}, v{a+q}, s41")
            A(f"  v_perm_b32 v{PP+8*p+2*q+1}, v{b+q}, v{a+q}, s42")
    stamp(2)
    A("  s_barrier")
    A(f"  ds_read_b128 v[{H}:{H+3}], v3")
    stamp(3)
    A("  s_waitcnt lgkmcnt(0)")
    for p in range(4):
        for t in range(8):
            A(f"  v_dot2c_f32_bf16 v{ACC+t}, v{PP+8*p+t}, v{H+p}")
    reduce_publish(fmt2, [8, 4], "v4", ([("s52", "")] if loc2 else []) + [("s53", " sc1")])
    stamp(4)
    if b3: A("  s_barrier")
    A("L_fin:")
    if stamps == 3:
        stamp(6)
        A("  s_waitcnt lgkmcnt(0)")
        A("  s_add_u32 s35, s32, s2")
        A("  s_cmp_lg_u32 s35, 0")
        A("  s_cbranch_scc1 L_end")
        A(f"  s_sub_u32 s35, s{64+2*dly}, s64")
        A("  s_lshl_b32 s35, s35, 2")
        A("  s_add_u32 s35, s35, s76")
        A("L_dly:")
        A("  s_memrealtime s[60:61]")
        A("  s_waitcnt lgkmcnt(0)")
        A("  s_sub_u32 s62, s60, s35")
        A("  s_cmp_lt_i32 s62, 0")
        A("  s_cbranch_scc1 L_dly")
    elif stamps:
        stamp(6)
        A("  s_waitcnt lgkmcnt(0)")
        A("  s_lshl_b32 s35, s2, 3")
        A("  s_add_u32 s35, s35, s32")
        A("  s_lshl_b32 s35, s35, 6")
        A(f"  s_add_u32 s35, s35, {STO}")
        for k in range(16): A(f"  v_mov_b32 v{112+k}, s{64+k}")
        A("  v_mov_b32 v15, 0")
        A("  s_mov_b64 exec, 1")
        for k in range(4): A(f"  buffer_store_dwordx4 v[{112+4*k}:{115+4*k}], v15, s[28:31], s35 offen offset:{16*k}")
    A("L_end:")
    A("  s_endpgm")
    nv = 128 if stamps == 1 else 112
    assert 48 + 4*K1*len(glds) <= 112
    A('.section .rodata,"a"'); A(".p2align 6"); A(f".amdhsa_kernel {name}")
    A(f"  .amdhsa_next_free_vgpr {nv}")
    A("  .amdhsa_next_free_sgpr 88")
    A(f"  .amdhsa_accum_offset {nv}")
    A("  .amdhsa_group_segment_fixed_size 0")
    A("  .amdhsa_kernarg_size 56")
    A("  .amdhsa_user_sgpr_count 2")
    A("  .amdhsa_user_sgpr_kernarg_segment_ptr 1")
    A("  .amdhsa_system_sgpr_workgroup_id_x 1")
    A("  .amdhsa_float_denorm_mode_32 3")
    A(".end_amdhsa_kernel")
    return "\n".join(o) + "\n"

if __name__ == "__main__":
    ap = argparse.ArgumentParser()
    for k, d in dict(stamps=0, dly=6, fmt1=4, fmt2=4, b15=0, cmap=0, K1=1, K2=1, st1=2, st2=2, b3=0, loc2=1, NA=300, warm2=1, rep1=1, b1=16, ush=0, ksh=0).items():
        ap.add_argument("--"+k, type=int, default=d)
    ap.add_argument("-o", default="-")
    a = vars(ap.parse_args()); out = a.pop("o")
    s = gen(**a)
    if out == "-": sys.stdout.write(s)
    else: open(out, "w").write(s)
```

```python
import sys, argparse, math, struct
f2u = lambda f: struct.unpack("<I", struct.pack("<f", f))[0]

def gen(stamps=0, name="standalone__glu_gated_geglu__decode_kernel", dly=6, K2=2, st2=1, NA=300, pre=0, e1pos=0, xskip=0, cmap=0, wfirst=0, prio=0):
    D, DF = 1024, 3584
    N, T = 224, 512
    S = 1024
    E1, E2 = 0, 28*128
    ANN = 5120
    MB2 = 8192; MB2B = MB2 + 224*S; MB1 = MB2B + 224*S; WSB = MB1 + 448*S
    STO = 2 << 20
    o = []; A = o.append
    for line in """GEGLU decode:  out = (gelu_tanh(x@Wg) * (x@Wu)) @ Wd      (bf16 in/out, fp32 accumulate)   -- one launch
workgroup (c = id>>3, k = id&7), c = 128-wide f tile (28), k = split index (8); 8 waves:
  waves 0-3: partial g/u of f tile c over rows d = k*128..+127  -> hand-off 1 (inside group c, 8 workgroups)
             then gather the 8 partials, h = bf16(bf16(gelu(bf16 g)) * bf16 u) -> LDS; some of them also reduce the output
  waves 4-7: w_down rows of f tile c x columns k*128..+127 (prefetched to registers) . h -> hand-off 2 (slice k, 28 workgroups)
hand-offs go through d_ws as 16-byte granules {f32, tag, f32, tag}; tag = epoch word + 1 (epoch words live in d_ws and only
tell this launch's granules from older contents; they are advanced once every reader has read them).
hand-off 1: sc1 stores + sc1 loads.  hand-off 2: copy A (plain store, seen at once by workgroups behind the same L2) and
copy B (sc1 store, seen under any placement); a reducer that does not see copy A falls back to copy B.""".split("\n"):
        A("; " + line)
    A(f"; @launch grid=({N},1,1) block=({T},1,1) lds=256")
    A('.amdgcn_target "amdgcn-amd-amdhsa--gfx950"')
    A(".text"); A(f".globl {name}"); A(".p2align 8"); A(f".type {name},@function"); A(f"{name}:")
    A(f"  s_cmp_ge_u32 s2, {N}")
    A("  s_cbranch_scc1 L_end")
    for i, r, nm in [(1,8,"w_gate"),(2,12,"w_up"),(0,4,"x"),(3,16,"w_down"),(6,28,"ws"),(4,20,"out")]:
        A(f"  s_load_dwordx2 s[{r}:{r+1}], s[0:1], {i*8}        ; {nm}")
    def stamp(i):
        if stamps: A(f"  s_memrealtime s[{64+2*i}:{65+2*i}]")
    if stamps:
        for i in range(16): A(f"  s_mov_b32 s{64+i}, 0")
    stamp(0)
    for r, sz in [(4,2048),(8,D*DF*2),(12,D*DF*2),(16,D*DF*2),(20,2048),(28,(STO + (1<<20)) if stamps else WSB)]:
        A(f"  s_mov_b32 s{r+2}, {sz}")
        A(f"  s_mov_b32 s{r+3}, 0x00020000")
    A("  v_readfirstlane_b32 s32, v0")
    A("  v_and_b32 v1, 63, v0                      ; lane")
    if cmap == 0:
        A("  s_and_b32 s34, s2, 7                      ; k")
        A("  s_lshr_b32 s33, s2, 3                     ; c")
    else:
        A(f"  s_mov_b32 s35, {(1<<32)//28+1}")
        A("  s_mul_hi_u32 s34, s2, s35")
        A("  s_mul_i32 s35, s34, 28")
        A("  s_sub_u32 s33, s2, s35")
    A("  s_lshr_b32 s32, s32, 6                    ; wave")
    A("  s_and_b32 s36, s32, 3")
    A("  s_lshl_b32 s58, s34, 7")
    A(f"  s_add_u32 s58, s58, {E2}")
    A("  s_cmp_ge_u32 s32, 4")
    A("  s_cbranch_scc1 L_p2")
    ACC = 16; R = 24

    def common_setup():
        A("  s_mov_b32 s41, 0x05040100")
        A("  s_mov_b32 s42, 0x07060302")
        A("  v_bfe_u32 v6, v1, 4, 1")
        A("  v_lshrrev_b32 v7, 5, v1")
        for t in range(8): A(f"  v_mov_b32 v{ACC+t}, 0")
        A("  v_lshlrev_b32 v4, 6, v4")
        A("  v_lshl_add_u32 v4, v7, 5, v4")
        A("  v_lshl_add_u32 v4, v6, 4, v4")

    def reduce(dpps):
        A("  s_nop 0")
        for t in range(4): A(f"  v_permlane32_swap_b32 v{ACC+t}, v{ACC+4+t}")
        for t in range(4): A(f"  v_add_f32 v{ACC+t}, v{ACC+t}, v{ACC+4+t}")
        A("  s_nop 0")
        for t in range(2): A(f"  v_permlane16_swap_b32 v{ACC+t}, v{ACC+2+t}")
        for t in range(2): A(f"  v_add_f32 v{ACC+t}, v{ACC+t}, v{ACC+2+t}")
        for n, rot in enumerate(dpps):
            last = n == len(dpps) - 1
            A("  s_nop 0")
            for t in range(2):
                dst = (R + 2*t) if last else ACC + t
                A(f"  v_add_f32_dpp v{dst}, v{ACC+t}, v{ACC+t} row_ror:{rot} row_mask:0xf bank_mask:0xf")
        A("  s_mov_b64 exec, s[62:63]")

    W0 = 48; XR = 40; TP = 32
    A(f"  s_mul_i32 s37, s34, {128*7168}")
    A("  s_lshl_b32 s38, s33, 8")
    A("  s_add_u32 s37, s37, s38")
    A("  s_and_b32 s38, s36, 1")
    A("  s_lshl_b32 s39, s38, 7")
    A("  s_add_u32 s37, s37, s39")
    A("  v_lshrrev_b32 v3, 3, v1")
    A("  v_and_b32 v4, 7, v1")
    A(f"  v_mul_u32_u24 v2, {16*7168}, v3")
    A("  v_lshl_add_u32 v2, v4, 4, v2")
    A("  v_lshlrev_b32 v3, 5, v3")
    A("  s_lshl_b32 s43, s34, 8")
    A("  s_lshl_b32 s57, s33, 7")
    A("  s_cmp_ge_u32 s36, 2")
    A("  s_waitcnt lgkmcnt(0)")
    A("  s_cselect_b32 s8, s12, s8")
    A("  s_cselect_b32 s9, s13, s9")
    def xl():
        A(f"  buffer_load_dwordx4 v[{XR}:{XR+3}], v3, s[4:7], s43 offen")
        A(f"  buffer_load_dwordx4 v[{XR+4}:{XR+7}], v3, s[4:7], s43 offen offset:16")
    if not wfirst: xl()
    for i in range(16):
        A(f"  buffer_load_dwordx4 v[{W0+4*i}:{W0+4*i+3}], v2, s[8:11], s37 offen")
        if i < 15: A("  s_add_u32 s37, s37, 7168")
        if i == 1 and wfirst: xl()
        if i == 1:
            A("  s_load_dword s40, s[28:29], s57")
            A("  s_load_dword s56, s[28:29], s58")
    stamp(1)
    A("  s_waitcnt lgkmcnt(0)")
    A("  s_barrier")
    common_setup()
    A(f"  s_lshl_b32 s44, s33, 14")
    A(f"  s_add_u32 s44, s44, {MB1}")
    A("  s_lshl_b32 s45, s34, 11")
    A("  s_add_u32 s45, s45, s44")
    A("  s_lshl_b32 s46, s36, 9")
    A("  s_add_u32 s45, s45, s46")
    A("  v_lshrrev_b32 v5, 4, v1")
    A("  v_lshlrev_b32 v5, 11, v5")
    A("  v_and_b32 v12, 15, v1")
    A("  v_lshl_add_u32 v5, v12, 4, v5")
    A("  s_lshl_b32 s46, s36, 8")
    A("  s_add_u32 s46, s46, s44")
    A("  s_add_u32 s47, s46, 8192")
    glds = [("s46", 0), ("s47", 0), ("s46", S), ("s47", S)]
    A("  v_lshl_add_u32 v12, v12, 1, v7")
    A("  s_lshl_b32 s48, s36, 5")
    A("  v_add_lshl_u32 v12, v12, s48, 1")
    A("  s_mul_i32 s50, s36, 28")
    A("  s_add_u32 s50, s50, s33")
    A(f"  s_mul_i32 s49, s34, {28*S}")
    A("  s_lshl_b32 s51, s50, 5")
    A("  s_add_u32 s49, s49, s51")
    A(f"  s_add_u32 s49, s49, {MB2}")
    A("  v_lshrrev_b32 v13, 1, v1")
    A("  v_and_b32 v14, 1, v1")
    A("  v_lshlrev_b32 v13, 10, v13")
    A("  v_lshl_add_u32 v13, v14, 4, v13")
    A("  v_lshl_add_u32 v14, v14, 1, v7")
    A("  v_lshlrev_b32 v14, 1, v14")
    A("  s_lshl_b32 s48, s34, 8")
    A("  s_lshl_b32 s51, s50, 3")
    A("  s_add_u32 s48, s48, s51")
    A("  v_mov_b32 v8, 0")
    A("  v_mov_b32 v9, 0")
    c1 = -2.0 * math.log2(math.e) * math.sqrt(2.0 / math.pi); c2 = c1 * 0.044715
    A(f"  v_mov_b32 v10, {f2u(c1):#x}")
    A("  s_add_u32 s40, s40, 1                     ; tag 1")
    A("  s_add_u32 s56, s56, 1                     ; tag 2")
    A(f"  v_mov_b32 v{R+1}, s40")
    A(f"  v_mov_b32 v{R+3}, s40")
    A("  s_mov_b32 s62, 0x00ff00ff")
    A("  s_mov_b32 s63, 0x00ff00ff")
    extra = 0
    if e1pos == 1:
        assert not xskip
        A("  s_lshl_b32 s55, s34, 2")
        A("  s_add_u32 s55, s55, s36")
    if xskip or pre:
        A("  s_cmp_ge_u32 s50, 32")
        A("  s_cbranch_scc1 L_noann")
        A("  s_mov_b64 exec, 1")
        if xskip:
            A("  s_getreg_b32 s55, hwreg(HW_REG_XCC_ID)")
            A("  s_lshl_b32 s51, s34, 5")
            A("  s_add_u32 s51, s51, s50")
            A("  s_lshl_b32 s51, s51, 3")
            A(f"  s_add_u32 s51, s51, {ANN}")
            A("  v_mov_b32 v28, s56")
            A("  v_mov_b32 v29, s55")
            A("  buffer_store_dwordx2 v[28:29], v8, s[28:31], s51 offen sc1")
        if pre:
            A("  buffer_load_ushort v30, v14, s[20:23], s48 offen")
        A("  s_mov_b64 exec, -1")
        A("L_noann:")
    for p in range(8):
        A(f"  s_waitcnt vmcnt({14-2*p})")
        a, b = W0 + 8*p, W0 + 8*p + 4
        for q in range(4):
            A(f"  v_perm_b32 v{TP+2*q}, v{b+q}, v{a+q}, s41")
            A(f"  v_perm_b32 v{TP+2*q+1}, v{b+q}, v{a+q}, s42")
        for t in range(8):
            A(f"  v_dot2c_f32_bf16 v{ACC+t}, v{TP+t}, v{XR+p}")
    stamp(2)
    reduce([8])
    A(f"  buffer_store_dwordx4 v[{R}:{R+3}], v4, s[28:31], s45 offen sc1")
    A("  s_mov_b64 exec, -1")
    A("  s_mov_b32 s59, 0")
    A("  s_barrier")
    G0 = 48
    A("L_poll1:")
    for t, (so, off) in enumerate(glds):
        A(f"  buffer_load_dwordx4 v[{G0+4*t}:{G0+4*t+3}], v5, s[28:31], {so} offen offset:{off} sc1")
    A("  s_add_u32 s59, s59, 1")
    for t in range(4):
        A(f"  s_waitcnt vmcnt({3-t})")
        A(f"  v_xor_b32 v{32+2*t}, s40, v{G0+4*t+1}")
        A(f"  v_xor_b32 v{33+2*t}, s40, v{G0+4*t+3}")
        if t == 1: A("  v_or3_b32 v15, v32, v33, v34")
        if t == 2: A("  v_or3_b32 v15, v15, v35, v36")
        if t == 3:
            A("  v_or3_b32 v15, v15, v37, v38")
            A("  v_or_b32 v15, v15, v39")
    A("  v_cmp_ne_u32 vcc, 0, v15")
    A("  s_and_b64 exec, vcc, vcc")
    A("  s_cbranch_scc0 L_got1")
    A("  s_cmp_lt_u32 s59, 0x400000")
    A("  s_cbranch_scc1 L_poll1")
    A("L_got1:")
    A("  s_mov_b64 exec, -1")
    stamp(3)
    if stamps: A("  s_mov_b32 s78, s59")
    if e1pos == 1:
        A("  s_cmp_lg_u32 s55, 3")
        A("  s_cbranch_scc1 L_noe1")
        A("  s_mov_b64 exec, 1")
        A(f"  buffer_store_dword v{R+1}, v8, s[28:31], s57 offen sc1")
        A("  s_mov_b64 exec, -1")
        A("L_noe1:")
    A(f"  v_add_f32 v16, v{G0}, v{G0+4}")
    A(f"  v_add_f32 v17, v{G0+2}, v{G0+6}")
    A(f"  v_add_f32 v18, v{G0+8}, v{G0+12}")
    A(f"  v_add_f32 v19, v{G0+10}, v{G0+14}")
    A("  s_nop 0")
    A("  v_permlane32_swap_b32 v16, v17")
    A("  v_permlane32_swap_b32 v18, v19")
    A("  v_add_f32 v16, v16, v17")
    A("  v_add_f32 v18, v18, v19")
    A("  v_mov_b32 v17, v16")
    A("  v_mov_b32 v19, v18")
    A("  s_nop 0")
    A("  v_permlane16_swap_b32 v16, v17")
    A("  v_permlane16_swap_b32 v18, v19")
    A("  v_add_f32 v16, v16, v17")
    A("  v_add_f32 v18, v18, v19")
    A("  v_cvt_pk_bf16_f32 v16, v16, v18")
    A("  v_lshlrev_b32 v20, 16, v16")
    A("  v_and_b32 v18, 0xffff0000, v16")
    A("  v_mul_f32 v15, v20, v20")
    A(f"  v_fmac_f32 v10, {f2u(c2):#x}, v15")
    A("  v_mul_f32 v10, v10, v20")
    A("  v_exp_f32 v10, v10")
    A("  s_nop 0")
    A("  v_add_f32 v10, 1.0, v10")
    A("  v_rcp_f32 v10, v10")
    A("  s_nop 0")
    A("  v_mul_f32 v10, v10, v20")
    A("  v_cvt_pk_bf16_f32 v10, v10, v10")
    A("  v_lshlrev_b32 v10, 16, v10")
    A("  v_mul_f32 v10, v10, v18")
    A("  v_cvt_pk_bf16_f32 v10, v10, v10")
    A("  ds_write_b16 v12, v10")
    A("  s_waitcnt lgkmcnt(0)")
    A("  s_barrier")
    stamp(4)
    A("  s_cmp_lt_u32 s50, 32")
    A("  s_cbranch_scc1 L_cons")
    if e1pos: A("  s_branch L_fin")
    A("  s_lshl_b32 s51, s34, 2")
    A("  s_add_u32 s51, s51, s36")
    A("  s_cmp_lg_u32 s51, 3")
    A("  s_cbranch_scc1 L_fin")
    A("  s_mov_b64 exec, 1")
    A(f"  buffer_store_dword v{R+1}, v8, s[28:31], s57 offen sc1")
    A("  s_branch L_fin")
    A("L_cons:")
    M0 = 64
    A("  s_mov_b32 s59, 0")
    A("  s_mov_b32 exec_hi, 0x00ffffff")
    def issue(s): A(f"  buffer_load_dwordx4 v[{M0+4*s}:{M0+4*s+3}], v13, s[28:31], s49 offen sc1")
    for s in range(K2-1):
        issue(s)
        if st2: A(f"  s_sleep {st2}")
    A("L_poll2:")
    for s in range(K2):
        issue((s + K2 - 1) % K2)
        r = M0 + 4*s
        A(f"  s_waitcnt vmcnt({K2-1})")
        A(f"  v_cmp_ne_u32 vcc, s56, v{r+1}")
        A(f"  v_cmp_ne_u32 s[60:61], s56, v{r+3}")
        A(f"  v_mov_b32 v8, v{r}")
        A(f"  v_mov_b32 v9, v{r+2}")
        A("  s_or_b64 exec, s[60:61], vcc")
        A("  s_cbranch_scc0 L_got2")
    A("  s_add_u32 s59, s59, 1")
    A(f"  s_cmp_eq_u32 s59, {NA // K2}")
    A(f"  s_cselect_b32 s51, {MB2B - MB2}, 0")
    A("  s_add_u32 s49, s49, s51")
    A("  s_cmp_lt_u32 s59, 0x400000")
    A("  s_cbranch_scc1 L_poll2")
    A("L_got2:")
    A("  s_mov_b64 exec, -1")
    stamp(5)
    if stamps: A("  s_add_u32 s79, s59, 1")
    A("  v_permlane32_swap_b32 v8, v9")
    A("  v_add_f32 v8, v8, v9")
    A("  v_mov_b32 v9, v8")
    A("  s_nop 1")
    A("  v_permlane16_swap_b32 v8, v9")
    A("  v_add_f32 v8, v8, v9")
    for rot in (8, 4, 2):
        A("  s_nop 1")
        A(f"  v_add_f32_dpp v8, v8, v8 row_ror:{rot} row_mask:0xf bank_mask:0xf")
    A("  s_mov_b32 exec_lo, 3")
    A("  s_mov_b32 exec_hi, 3")
    A("  v_cvt_pk_bf16_f32 v15, v8, v8")
    A("  buffer_store_short v15, v14, s[20:23], s48 offen")
    A("  s_cmp_lg_u32 s50, 0")
    A("  s_cbranch_scc1 L_fin")
    A("  s_mov_b64 exec, 1")
    A("  v_mov_b32 v14, 0")
    A("  v_mov_b32 v15, s56")
    A("  buffer_store_dword v15, v14, s[28:31], s58 offen")
    A("  s_branch L_fin")
    A("L_p2:")
    WD = 48; PP = 80; H = 40
    A(f"  s_mul_i32 s37, s33, {128*2048}")
    A("  s_lshl_b32 s38, s34, 8")
    A("  s_add_u32 s37, s37, s38")
    A("  s_lshl_b32 s38, s36, 6")
    A("  s_add_u32 s37, s37, s38")
    A("  v_lshrrev_b32 v3, 2, v1")
    A("  v_and_b32 v4, 3, v1")
    A("  v_lshlrev_b32 v2, 14, v3")
    A("  v_lshl_add_u32 v2, v4, 4, v2")
    A("  v_lshlrev_b32 v3, 4, v3")
    common_setup()
    A("  s_mul_i32 s52, s34, 28")
    A("  s_add_u32 s52, s52, s33")
    A("  s_lshl_b32 s52, s52, 10")
    A("  s_lshl_b32 s46, s36, 8")
    A("  s_add_u32 s52, s52, s46")
    A(f"  s_add_u32 s53, s52, {MB2B}")
    A(f"  s_add_u32 s52, s52, {MB2}")
    A("  s_mov_b32 s62, 0x000f000f")
    A("  s_mov_b32 s63, 0x000f000f")
    if xskip:
        A("  s_getreg_b32 s55, hwreg(HW_REG_XCC_ID)")
        A("  s_lshl_b32 s51, s34, 8")
        A("  s_lshl_b32 s54, s36, 6")
        A("  s_add_u32 s51, s51, s54")
        A(f"  s_add_u32 s51, s51, {ANN}")
        A("  v_and_b32 v5, 7, v1")
        A("  v_lshlrev_b32 v5, 3, v5")
    A("  s_waitcnt lgkmcnt(0)")
    A("  s_load_dword s56, s[28:29], s58")
    A("  s_waitcnt lgkmcnt(0)")
    A("  s_barrier                                 ; B1")
    for i in range(8):
        A(f"  buffer_load_dwordx4 v[{WD+4*i}:{WD+4*i+3}], v2, s[16:19], s37 offen offset:{(i&1)*2048}")
        if i & 1 and i < 7: A("  s_add_u32 s37, s37, 4096")
    stamp(1)
    A("  s_add_u32 s56, s56, 1")
    A(f"  v_mov_b32 v{R+1}, s56")
    A(f"  v_mov_b32 v{R+3}, s56")
    for p in range(4):
        A(f"  s_waitcnt vmcnt({6-2*p})")
        if p == 3:
            A("  s_barrier                                 ; B2")
            if xskip: A("  buffer_load_dwordx2 v[44:45], v5, s[28:31], s51 offen sc1")
        a, b = WD + 8*p, WD + 8*p + 4
        for q in range(4):
            A(f"  v_perm_b32 v{PP+8*p+2*q}, v{b+q}, v{a+q}, s41")
            A(f"  v_perm_b32 v{PP+8*p+2*q+1}, v{b+q}, v{a+q}, s42")
    if xskip:
        A("  s_waitcnt vmcnt(0)")
        A("  v_cmp_ne_u32 vcc, s56, v44")
        A("  v_cmp_ne_u32 s[60:61], s55, v45")
        A("  s_or_b64 s[60:61], s[60:61], vcc")
    stamp(2)
    if prio: A(f"  s_setprio {prio}")
    A("  s_barrier                                 ; B3")
    A(f"  ds_read_b128 v[{H}:{H+3}], v3")
    stamp(3)
    A("  s_waitcnt lgkmcnt(0)")
    for p in range(4):
        for t in range(8):
            A(f"  v_dot2c_f32_bf16 v{ACC+t}, v{PP+8*p+t}, v{H+p}")
    reduce([8, 4])
    A(f"  buffer_store_dwordx4 v[{R}:{R+3}], v4, s[28:31], s52 offen")
    if xskip:
        A("  s_cmp_eq_u64 s[60:61], 0")
        A("  s_cbranch_scc1 L_nob")
    A(f"  buffer_store_dwordx4 v[{R}:{R+3}], v4, s[28:31], s53 offen sc1")
    A("L_nob:")
    stamp(4)
    A("L_fin:")
    if stamps == 3:
        stamp(6)
        A("  s_waitcnt lgkmcnt(0)")
        A("  s_add_u32 s35, s32, s2")
        A("  s_cmp_lg_u32 s35, 0")
        A("  s_cbranch_scc1 L_end")
        A(f"  s_sub_u32 s35, s{64+2*dly}, s64")
        A("  s_lshl_b32 s35, s35, 2")
        A("  s_add_u32 s35, s35, s76")
        A("L_dly:")
        A("  s_memrealtime s[60:61]")
        A("  s_waitcnt lgkmcnt(0)")
        A("  s_sub_u32 s62, s60, s35")
        A("  s_cmp_lt_i32 s62, 0")
        A("  s_cbranch_scc1 L_dly")
    elif stamps:
        stamp(6)
        A("  s_waitcnt lgkmcnt(0)")
        A("  s_lshl_b32 s35, s2, 3")
        A("  s_add_u32 s35, s35, s32")
        A("  s_lshl_b32 s35, s35, 6")
        A(f"  s_add_u32 s35, s35, {STO}")
        A("  s_mov_b64 exec, 1")
        for k in range(16): A(f"  v_mov_b32 v{112+k}, s{64+k}")
        A("  v_mov_b32 v15, 0")
        for k in range(4): A(f"  buffer_store_dwordx4 v[{112+4*k}:{115+4*k}], v15, s[28:31], s35 offen offset:{16*k}")
    A("L_end:")
    A("  s_endpgm")
    nv = 128 if stamps == 1 else 112
    A('.section .rodata,"a"'); A(".p2align 6"); A(f".amdhsa_kernel {name}")
    A(f"  .amdhsa_next_free_vgpr {nv}")
    A(f"  .amdhsa_next_free_sgpr {80 if stamps else 64}")
    A(f"  .amdhsa_accum_offset {nv}")
    A("  .amdhsa_group_segment_fixed_size 0")
    A("  .amdhsa_kernarg_size 56")
    A("  .amdhsa_user_sgpr_count 2")
    A("  .amdhsa_user_sgpr_kernarg_segment_ptr 1")
    A("  .amdhsa_system_sgpr_workgroup_id_x 1")
    A("  .amdhsa_float_denorm_mode_32 3")
    A(".end_amdhsa_kernel")
    return "\n".join(o) + "\n"

if __name__ == "__main__":
    ap = argparse.ArgumentParser()
    for k, d in dict(stamps=0, dly=6, K2=2, st2=1, NA=300, pre=0, e1pos=0, xskip=0, cmap=0, wfirst=0, prio=0).items():
        ap.add_argument("--"+k, type=int, default=d)
    ap.add_argument("-o", default="-")
    a = vars(ap.parse_args()); out = a.pop("o")
    s = gen(**a)
    if out == "-": sys.stdout.write(s)
    else: open(out, "w").write(s)
```

```python
import sys, argparse, math, struct
f2u = lambda f: struct.unpack("<I", struct.pack("<f", f))[0]

def gen(stamps=0, name="standalone__glu_gated_geglu__decode_kernel", dly=6, K2=2, st2=1, NA=300, pre=0, e1pos=0, xskip=0, cmap=0, wfirst=0, prio=0):
    D, DF = 1024, 3584
    N, T = 224, 512
    S = 1024
    E1, E2 = 0, 28*128
    ANN = 5120
    MB2 = 8192; MB2B = MB2 + 224*S; MB1 = MB2B + 224*S; WSB = MB1 + 448*S
    STO = 2 << 20
    o = []; A = o.append
    A(f"; @launch grid=({N},1,1) block=({T},1,1) lds=256")
    A('.amdgcn_target "amdgcn-amd-amdhsa--gfx950"')
    A(".text"); A(f".globl {name}"); A(".p2align 8"); A(f".type {name},@function"); A(f"{name}:")
    A(f"  s_cmp_ge_u32 s2, {N}")
    A("  s_cbranch_scc1 L_end")
    for i, r, nm in [(1,8,"w_gate"),(2,12,"w_up"),(0,4,"x"),(3,16,"w_down"),(6,28,"ws"),(4,20,"out")]:
        A(f"  s_load_dwordx2 s[{r}:{r+1}], s[0:1], {i*8}        ; {nm}")
    def stamp(i):
        if stamps: A(f"  s_memrealtime s[{64+2*i}:{65+2*i}]")
    if stamps:
        for i in range(16): A(f"  s_mov_b32 s{64+i}, 0")
    stamp(0)
    for r, sz in [(4,2048),(8,D*DF*2),(12,D*DF*2),(16,D*DF*2),(20,2048),(28,(STO + (1<<20)) if stamps else WSB)]:
        A(f"  s_mov_b32 s{r+2}, {sz}")
        A(f"  s_mov_b32 s{r+3}, 0x00020000")
    A("  v_readfirstlane_b32 s32, v0")
    A("  v_and_b32 v1, 63, v0                      ; lane")
    if cmap == 0:
        A("  s_and_b32 s34, s2, 7                      ; k")
        A("  s_lshr_b32 s33, s2, 3                     ; c")
    else:
        A(f"  s_mov_b32 s35, {(1<<32)//28+1}")
        A("  s_mul_hi_u32 s34, s2, s35")
        A("  s_mul_i32 s35, s34, 28")
        A("  s_sub_u32 s33, s2, s35")
    A("  s_lshr_b32 s32, s32, 6                    ; wave")
    A("  s_and_b32 s36, s32, 3")
    A("  s_lshl_b32 s58, s34, 7")
    A(f"  s_add_u32 s58, s58, {E2}")
    A("  s_cmp_ge_u32 s32, 4")
    A("  s_cbranch_scc1 L_p2")
    ACC = 16; R = 24

    def common_setup():
        A("  s_mov_b32 s41, 0x05040100")
        A("  s_mov_b32 s42, 0x07060302")
        A("  v_bfe_u32 v6, v1, 4, 1")
        A("  v_lshrrev_b32 v7, 5, v1")
        for t in range(8): A(f"  v_mov_b32 v{ACC+t}, 0")
        A("  v_lshlrev_b32 v4, 6, v4")
        A("  v_lshl_add_u32 v4, v7, 5, v4")
        A("  v_lshl_add_u32 v4, v6, 4, v4")

    def reduce(dpps):
        A("  s_nop 0")
        for t in range(4): A(f"  v_permlane32_swap_b32 v{ACC+t}, v{ACC+4+t}")
        for t in range(4): A(f"  v_add_f32 v{ACC+t}, v{ACC+t}, v{ACC+4+t}")
        A("  s_nop 0")
        for t in range(2): A(f"  v_permlane16_swap_b32 v{ACC+t}, v{ACC+2+t}")
        for t in range(2): A(f"  v_add_f32 v{ACC+t}, v{ACC+t}, v{ACC+2+t}")
        for n, rot in enumerate(dpps):
            last = n == len(dpps) - 1
            A("  s_nop 0")
            for t in range(2):
                dst = (R + 2*t) if last else ACC + t
                A(f"  v_add_f32_dpp v{dst}, v{ACC+t}, v{ACC+t} row_ror:{rot} row_mask:0xf bank_mask:0xf")
        A("  s_mov_b64 exec, s[62:63]")

    W0 = 48; XR = 40; TP = 32
    A(f"  s_mul_i32 s37, s34, {128*7168}")
    A("  s_lshl_b32 s38, s33, 8")
    A("  s_add_u32 s37, s37, s38")
    A("  s_and_b32 s38, s36, 1")
    A("  s_lshl_b32 s39, s38, 7")
    A("  s_add_u32 s37, s37, s39")
    A("  v_lshrrev_b32 v3, 3, v1")
    A("  v_and_b32 v4, 7, v1")
    A(f"  v_mul_u32_u24 v2, {16*7168}, v3")
    A("  v_lshl_add_u32 v2, v4, 4, v2")
    A("  v_lshlrev_b32 v3, 5, v3")
    A("  s_lshl_b32 s43, s34, 8")
    A("  s_lshl_b32 s57, s33, 7")
    A("  s_cmp_ge_u32 s36, 2")
    A("  s_waitcnt lgkmcnt(0)")
    A("  s_cselect_b32 s8, s12, s8")
    A("  s_cselect_b32 s9, s13, s9")
    def xl():
        A(f"  buffer_load_dwordx4 v[{XR}:{XR+3}], v3, s[4:7], s43 offen")
        A(f"  buffer_load_dwordx4 v[{XR+4}:{XR+7}], v3, s[4:7], s43 offen offset:16")
    if not wfirst: xl()
    for i in range(16):
        A(f"  buffer_load_dwordx4 v[{W0+4*i}:{W0+4*i+3}], v2, s[8:11], s37 offen")
        if i < 15: A("  s_add_u32 s37, s37, 7168")
        if i == 1 and wfirst: xl()
        if i == 1:
            A("  s_load_dword s40, s[28:29], s57")
            A("  s_load_dword s56, s[28:29], s58")
    stamp(1)
    A("  s_waitcnt lgkmcnt(0)")
    A("  s_barrier")
    common_setup()
    A(f"  s_lshl_b32 s44, s33, 14")
    A(f"  s_add_u32 s44, s44, {MB1}")
    A("  s_lshl_b32 s45, s34, 11")
    A("  s_add_u32 s45, s45, s44")
    A("  s_lshl_b32 s46, s36, 9")
    A("  s_add_u32 s45, s45, s46")
    A("  v_lshrrev_b32 v5, 4, v1")
    A("  v_lshlrev_b32 v5, 11, v5")
    A("  v_and_b32 v12, 15, v1")
    A("  v_lshl_add_u32 v5, v12, 4, v5")
    A("  s_lshl_b32 s46, s36, 8")
    A("  s_add_u32 s46, s46, s44")
    A("  s_add_u32 s47, s46, 8192")
    glds = [("s46", 0), ("s47", 0), ("s46", S), ("s47", S)]
    A("  v_lshl_add_u32 v12, v12, 1, v7")
    A("  s_lshl_b32 s48, s36, 5")
    A("  v_add_lshl_u32 v12, v12, s48, 1")
    A("  s_mul_i32 s50, s36, 28")
    A("  s_add_u32 s50, s50, s33")
    A(f"  s_mul_i32 s49, s34, {28*S}")
    A("  s_lshl_b32 s51, s50, 5")
    A("  s_add_u32 s49, s49, s51")
    A(f"  s_add_u32 s49, s49, {MB2}")
    A("  v_lshrrev_b32 v13, 1, v1")
    A("  v_and_b32 v14, 1, v1")
    A("  v_lshlrev_b32 v13, 10, v13")
    A("  v_lshl_add_u32 v13, v14, 4, v13")
    A("  v_lshl_add_u32 v14, v14, 1, v7")
    A("  v_lshlrev_b32 v14, 1, v14")
    A("  s_lshl_b32 s48, s34, 8")
    A("  s_lshl_b32 s51, s50, 3")
    A("  s_add_u32 s48, s48, s51")
    A("  v_mov_b32 v8, 0")
    A("  v_mov_b32 v9, 0")
    c1 = -2.0 * math.log2(math.e) * math.sqrt(2.0 / math.pi); c2 = c1 * 0.044715
    A(f"  v_mov_b32 v10, {f2u(c1):#x}")
    A("  s_add_u32 s40, s40, 1                     ; tag 1")
    A("  s_add_u32 s56, s56, 1                     ; tag 2")
    A(f"  v_mov_b32 v{R+1}, s40")
    A(f"  v_mov_b32 v{R+3}, s40")
    A("  s_mov_b32 s62, 0x00ff00ff")
    A("  s_mov_b32 s63, 0x00ff00ff")
    extra = 0
    if xskip or pre:
        A("  s_cmp_ge_u32 s50, 32")
        A("  s_cbranch_scc1 L_noann")
        A("  s_mov_b64 exec, 1")
        if xskip:
            A("  s_getreg_b32 s55, hwreg(HW_REG_XCC_ID)")
            A("  s_lshl_b32 s51, s34, 5")
            A("  s_add_u32 s51, s51, s50")
            A("  s_lshl_b32 s51, s51, 3")
            A(f"  s_add_u32 s51, s51, {ANN}")
            A("  v_mov_b32 v28, s56")
            A("  v_mov_b32 v29, s55")
            A("  buffer_store_dwordx2 v[28:29], v8, s[28:31], s51 offen sc1")
        if pre:
            A("  buffer_load_ushort v30, v14, s[20:23], s48 offen")
        A("  s_mov_b64 exec, -1")
        A("L_noann:")
    for p in range(8):
        A(f"  s_waitcnt vmcnt({14-2*p})")
        a, b = W0 + 8*p, W0 + 8*p + 4
        for q in range(4):
            A(f"  v_perm_b32 v{TP+2*q}, v{b+q}, v{a+q}, s41")
            A(f"  v_perm_b32 v{TP+2*q+1}, v{b+q}, v{a+q}, s42")
        for t in range(8):
            A(f"  v_dot2c_f32_bf16 v{ACC+t}, v{TP+t}, v{XR+p}")
    stamp(2)
    reduce([8])
    A(f"  buffer_store_dwordx4 v[{R}:{R+3}], v4, s[28:31], s45 offen sc1")
    A("  s_mov_b64 exec, -1")
    A("  s_mov_b32 s59, 0")
    A("  s_barrier")
    G0 = 48
    A("L_poll1:")
    for t, (so, off) in enumerate(glds):
        A(f"  buffer_load_dwordx4 v[{G0+4*t}:{G0+4*t+3}], v5, s[28:31], {so} offen offset:{off} sc1")
    A("  s_add_u32 s59, s59, 1")
    for t in range(4):
        A(f"  s_waitcnt vmcnt({3-t})")
        A(f"  v_xor_b32 v{32+2*t}, s40, v{G0+4*t+1}")
        A(f"  v_xor_b32 v{33+2*t}, s40, v{G0+4*t+3}")
        if t == 1: A("  v_or3_b32 v15, v32, v33, v34")
        if t == 2: A("  v_or3_b32 v15, v15, v35, v36")
        if t == 3:
            A("  v_or3_b32 v15, v15, v37, v38")
            A("  v_or_b32 v15, v15, v39")
    A("  v_cmp_ne_u32 vcc, 0, v15")
    A("  s_and_b64 exec, vcc, vcc")
    A("  s_cbranch_scc0 L_got1")
    A("  s_cmp_lt_u32 s59, 0x400000")
    A("  s_cbranch_scc1 L_poll1")
    A("L_got1:")
    A("  s_mov_b64 exec, -1")
    stamp(3)
    if stamps: A("  s_mov_b32 s78, s59")
    A(f"  v_add_f32 v16, v{G0}, v{G0+4}")
    A(f"  v_add_f32 v17, v{G0+2}, v{G0+6}")
    A(f"  v_add_f32 v18, v{G0+8}, v{G0+12}")
    A(f"  v_add_f32 v19, v{G0+10}, v{G0+14}")
    A("  s_nop 0")
    A("  v_permlane32_swap_b32 v16, v17")
    A("  v_permlane32_swap_b32 v18, v19")
    A("  v_add_f32 v16, v16, v17")
    A("  v_add_f32 v18, v18, v19")
    A("  v_mov_b32 v17, v16")
    A("  v_mov_b32 v19, v18")
    A("  s_nop 0")
    A("  v_permlane16_swap_b32 v16, v17")
    A("  v_permlane16_swap_b32 v18, v19")
    A("  v_add_f32 v16, v16, v17")
    A("  v_add_f32 v18, v18, v19")
    A("  v_cvt_pk_bf16_f32 v16, v16, v18")
    A("  v_lshlrev_b32 v20, 16, v16")
    A("  v_and_b32 v18, 0xffff0000, v16")
    A("  v_mul_f32 v15, v20, v20")
    A(f"  v_fmac_f32 v10, {f2u(c2):#x}, v15")
    A("  v_mul_f32 v10, v10, v20")
    A("  v_exp_f32 v10, v10")
    A("  s_nop 0")
    A("  v_add_f32 v10, 1.0, v10")
    A("  v_rcp_f32 v10, v10")
    A("  s_nop 0")
    A("  v_mul_f32 v10, v10, v20")
    A("  v_cvt_pk_bf16_f32 v10, v10, v10")
    A("  v_lshlrev_b32 v10, 16, v10")
    A("  v_mul_f32 v10, v10, v18")
    A("  v_cvt_pk_bf16_f32 v10, v10, v10")
    A("  ds_write_b16 v12, v10")
    A("  s_waitcnt lgkmcnt(0)")
    A("  s_barrier")
    stamp(4)
    A("  s_cmp_lt_u32 s50, 32")
    A("  s_cbranch_scc1 L_cons")
    A("  s_lshl_b32 s51, s34, 2")
    A("  s_add_u32 s51, s51, s36")
    A("  s_cmp_lg_u32 s51, 3")
    A("  s_cbranch_scc1 L_fin")
    A("  s_mov_b64 exec, 1")
    A(f"  buffer_store_dword v{R+1}, v8, s[28:31], s57 offen sc1")
    A("  s_branch L_fin")
    A("L_cons:")
    M0 = 64
    A("  s_mov_b32 s59, 0")
    A("  s_mov_b32 exec_hi, 0x00ffffff")
    def issue(s): A(f"  buffer_load_dwordx4 v[{M0+4*s}:{M0+4*s+3}], v13, s[28:31], s49 offen sc1")
    for s in range(K2-1):
        issue(s)
        if st2: A(f"  s_sleep {st2}")
    A("L_poll2:")
    for s in range(K2):
        issue((s + K2 - 1) % K2)
        r = M0 + 4*s
        A(f"  s_waitcnt vmcnt({K2-1})")
        A(f"  v_cmp_ne_u32 vcc, s56, v{r+1}")
        A(f"  v_cmp_ne_u32 s[60:61], s56, v{r+3}")
        A(f"  v_mov_b32 v8, v{r}")
        A(f"  v_mov_b32 v9, v{r+2}")
        A("  s_or_b64 exec, s[60:61], vcc")
        A("  s_cbranch_scc0 L_got2")
    A("  s_add_u32 s59, s59, 1")
    A(f"  s_cmp_eq_u32 s59, {NA // K2}")
    A(f"  s_cselect_b32 s51, {MB2B - MB2}, 0")
    A("  s_add_u32 s49, s49, s51")
    A("  s_cmp_lt_u32 s59, 0x400000")
    A("  s_cbranch_scc1 L_poll2")
    A("L_got2:")
    A("  s_mov_b64 exec, -1")
    stamp(5)
    if stamps: A("  s_add_u32 s79, s59, 1")
    A("  v_permlane32_swap_b32 v8, v9")
    A("  v_add_f32 v8, v8, v9")
    A("  v_mov_b32 v9, v8")
    A("  s_nop 1")
    A("  v_permlane16_swap_b32 v8, v9")
    A("  v_add_f32 v8, v8, v9")
    for rot in (8, 4, 2):
        A("  s_nop 1")
        A(f"  v_add_f32_dpp v8, v8, v8 row_ror:{rot} row_mask:0xf bank_mask:0xf")
    A("  s_mov_b32 exec_lo, 3")
    A("  s_mov_b32 exec_hi, 3")
    A("  v_cvt_pk_bf16_f32 v15, v8, v8")
    A("  buffer_store_short v15, v14, s[20:23], s48 offen")
    A("  s_cmp_lg_u32 s50, 0")
    A("  s_cbranch_scc1 L_fin")
    A("  s_mov_b64 exec, 1")
    A("  v_mov_b32 v14, 0")
    A("  v_mov_b32 v15, s56")
    A("  buffer_store_dword v15, v14, s[28:31], s58 offen")
    A("  s_branch L_fin")
    A("L_p2:")
    WD = 48; PP = 80; H = 40
    A(f"  s_mul_i32 s37, s33, {128*2048}")
    A("  s_lshl_b32 s38, s34, 8")
    A("  s_add_u32 s37, s37, s38")
    A("  s_lshl_b32 s38, s36, 6")
    A("  s_add_u32 s37, s37, s38")
    A("  v_lshrrev_b32 v3, 2, v1")
    A("  v_and_b32 v4, 3, v1")
    A("  v_lshlrev_b32 v2, 14, v3")
    A("  v_lshl_add_u32 v2, v4, 4, v2")
    A("  v_lshlrev_b32 v3, 4, v3")
    common_setup()
    A("  s_mul_i32 s52, s34, 28")
    A("  s_add_u32 s52, s52, s33")
    A("  s_lshl_b32 s52, s52, 10")
    A("  s_lshl_b32 s46, s36, 8")
    A("  s_add_u32 s52, s52, s46")
    A(f"  s_add_u32 s53, s52, {MB2B}")
    A(f"  s_add_u32 s52, s52, {MB2}")
    A("  s_mov_b32 s62, 0x000f000f")
    A("  s_mov_b32 s63, 0x000f000f")
    if xskip:
        A("  s_getreg_b32 s55, hwreg(HW_REG_XCC_ID)")
        A("  s_lshl_b32 s51, s34, 8")
        A("  s_lshl_b32 s54, s36, 6")
        A("  s_add_u32 s51, s51, s54")
        A(f"  s_add_u32 s51, s51, {ANN}")
        A("  v_and_b32 v5, 7, v1")
        A("  v_lshlrev_b32 v5, 3, v5")
    A("  s_waitcnt lgkmcnt(0)")
    A("  s_load_dword s56, s[28:29], s58")
    A("  s_waitcnt lgkmcnt(0)")
    A("  s_barrier                                 ; B1")
    for i in range(8):
        A(f"  buffer_load_dwordx4 v[{WD+4*i}:{WD+4*i+3}], v2, s[16:19], s37 offen offset:{(i&1)*2048}")
        if i & 1 and i < 7: A("  s_add_u32 s37, s37, 4096")
    stamp(1)
    A("  s_add_u32 s56, s56, 1")
    A(f"  v_mov_b32 v{R+1}, s56")
    A(f"  v_mov_b32 v{R+3}, s56")
    for p in range(4):
        A(f"  s_waitcnt vmcnt({6-2*p})")
        if p == 3:
            A("  s_barrier                                 ; B2")
            if xskip: A("  buffer_load_dwordx2 v[44:45], v5, s[28:31], s51 offen sc1")
        a, b = WD + 8*p, WD + 8*p + 4
        for q in range(4):
            A(f"  v_perm_b32 v{PP+8*p+2*q}, v{b+q}, v{a+q}, s41")
            A(f"  v_perm_b32 v{PP+8*p+2*q+1}, v{b+q}, v{a+q}, s42")
    if xskip:
        A("  s_waitcnt vmcnt(0)")
        A("  v_cmp_ne_u32 vcc, s56, v44")
        A("  v_cmp_ne_u32 s[60:61], s55, v45")
        A("  s_or_b64 s[60:61], s[60:61], vcc")
    stamp(2)
    if prio: A(f"  s_setprio {prio}")
    A("  s_barrier                                 ; B3")
    A(f"  ds_read_b128 v[{H}:{H+3}], v3")
    stamp(3)
    A("  s_waitcnt lgkmcnt(0)")
    for p in range(4):
        for t in range(8):
            A(f"  v_dot2c_f32_bf16 v{ACC+t}, v{PP+8*p+t}, v{H+p}")
    reduce([8, 4])
    A(f"  buffer_store_dwordx4 v[{R}:{R+3}], v4, s[28:31], s52 offen")
    if xskip:
        A("  s_cmp_eq_u64 s[60:61], 0")
        A("  s_cbranch_scc1 L_nob")
    A(f"  buffer_store_dwordx4 v[{R}:{R+3}], v4, s[28:31], s53 offen sc1")
    A("L_nob:")
    stamp(4)
    A("L_fin:")
    if stamps == 3:
        stamp(6)
        A("  s_waitcnt lgkmcnt(0)")
        A("  s_add_u32 s35, s32, s2")
        A("  s_cmp_lg_u32 s35, 0")
        A("  s_cbranch_scc1 L_end")
        A(f"  s_sub_u32 s35, s{64+2*dly}, s64")
        A("  s_lshl_b32 s35, s35, 2")
        A("  s_add_u32 s35, s35, s76")
        A("L_dly:")
        A("  s_memrealtime s[60:61]")
        A("  s_waitcnt lgkmcnt(0)")
        A("  s_sub_u32 s62, s60, s35")
        A("  s_cmp_lt_i32 s62, 0")
        A("  s_cbranch_scc1 L_dly")
    elif stamps:
        stamp(6)
        A("  s_waitcnt lgkmcnt(0)")
        A("  s_lshl_b32 s35, s2, 3")
        A("  s_add_u32 s35, s35, s32")
        A("  s_lshl_b32 s35, s35, 6")
        A(f"  s_add_u32 s35, s35, {STO}")
        A("  s_mov_b64 exec, 1")
        for k in range(16): A(f"  v_mov_b32 v{112+k}, s{64+k}")
        A("  v_mov_b32 v15, 0")
        for k in range(4): A(f"  buffer_store_dwordx4 v[{112+4*k}:{115+4*k}], v15, s[28:31], s35 offen offset:{16*k}")
    A("L_end:")
    A("  s_endpgm")
    nv = 128 if stamps == 1 else 112
    A('.section .rodata,"a"'); A(".p2align 6"); A(f".amdhsa_kernel {name}")
    A(f"  .amdhsa_next_free_vgpr {nv}")
    A(f"  .amdhsa_next_free_sgpr {80 if stamps else 64}")
    A(f"  .amdhsa_accum_offset {nv}")
    A("  .amdhsa_group_segment_fixed_size 0")
    A("  .amdhsa_kernarg_size 56")
    A("  .amdhsa_user_sgpr_count 2")
    A("  .amdhsa_user_sgpr_kernarg_segment_ptr 1")
    A("  .amdhsa_system_sgpr_workgroup_id_x 1")
    A("  .amdhsa_float_denorm_mode_32 3")
    A(".end_amdhsa_kernel")
    return "\n".join(o) + "\n"

if __name__ == "__main__":
    ap = argparse.ArgumentParser()
    for k, d in dict(stamps=0, dly=6, K2=2, st2=1, NA=300, pre=0, e1pos=0, xskip=0, cmap=0, wfirst=0, prio=0).items():
        ap.add_argument("--"+k, type=int, default=d)
    ap.add_argument("-o", default="-")
    a = vars(ap.parse_args()); out = a.pop("o")
    s = gen(**a)
    if out == "-": sys.stdout.write(s)
    else: open(out, "w").write(s)
```

```python
import sys, argparse, math, struct
f2u = lambda f: struct.unpack("<I", struct.pack("<f", f))[0]

def gen(stamps=0, name="standalone__glu_gated_geglu__decode_kernel", dly=6, K2=2, st2=1, NA=300, cmap=0, mm=1, b1=32):
    D, DF = 1024, 3584
    N, T = 224, 384
    S = 1024
    E1, E2 = 0, 28*128
    MB2 = 8192; MB2B = MB2 + 224*S; MB1 = MB2B + 224*S; WSB = MB1 + 224*S
    STO = 2 << 20
    o = []; A = o.append
    for line in """GEGLU decode:  out = (gelu_tanh(x@Wg) * (x@Wu)) @ Wd      (bf16 in/out, fp32 accumulate)   -- one launch
workgroup (c = id>>3, k = id&7), c = 128-wide f tile (28), k = 0..7; 6 waves:
  waves 0-1: partial of g (k even) or u (k odd) for f tile c over rows d = (k>>1)*256..+255 -> hand-off 1 (group c, 8 workgroups)
             afterwards some of them reduce the output partials of slice k
  waves 2-5: prefetch w_down rows of f tile c x columns k*128..+127 into registers; gather the 4+4 partials,
             h = bf16(bf16(gelu(bf16 g)) * bf16 u) -> LDS; w_down tile . h -> hand-off 2 (slice k, 28 workgroups)
hand-offs go through d_ws as 16-byte granules {f32, tag, f32, tag}; tag = epoch word + 1 (epoch words live in d_ws and only
tell this launch's granules from older contents; they are advanced once every reader has read them).
hand-off 1: sc1 stores + sc1 loads.  hand-off 2: copy A (plain store, seen at once by workgroups behind the same L2) and
copy B (sc1 store, seen under any placement); a reducer that does not see copy A falls back to copy B.""".split("\n"):
        A("; " + line)
    A(f"; @launch grid=({N},1,1) block=({T},1,1) lds=256")
    A('.amdgcn_target "amdgcn-amd-amdhsa--gfx950"')
    A(".text"); A(f".globl {name}"); A(".p2align 8"); A(f".type {name},@function"); A(f"{name}:")
    A(f"  s_cmp_ge_u32 s2, {N}")
    A("  s_cbranch_scc1 L_end")
    for i, r, nm in [(1,8,"w_gate"),(2,12,"w_up"),(0,4,"x"),(3,16,"w_down"),(6,28,"ws"),(4,20,"out")]:
        A(f"  s_load_dwordx2 s[{r}:{r+1}], s[0:1], {i*8}        ; {nm}")
    def stamp(i):
        if stamps: A(f"  s_memrealtime s[{64+2*i}:{65+2*i}]")
    if stamps:
        for i in range(16): A(f"  s_mov_b32 s{64+i}, 0")
    stamp(0)
    for r, sz in [(4,2048),(8,D*DF*2),(12,D*DF*2),(16,D*DF*2),(20,2048),(28,(STO + (1<<20)) if stamps else WSB)]:
        A(f"  s_mov_b32 s{r+2}, {sz}")
        A(f"  s_mov_b32 s{r+3}, 0x00020000")
    A("  v_readfirstlane_b32 s32, v0")
    A("  v_and_b32 v1, 63, v0                      ; lane")
    if cmap == 0:
        A("  s_and_b32 s34, s2, 7                      ; k")
        A("  s_lshr_b32 s33, s2, 3                     ; c")
    else:
        A(f"  s_mov_b32 s35, {(1<<32)//28+1}")
        A("  s_mul_hi_u32 s34, s2, s35")
        A("  s_mul_i32 s35, s34, 28")
        A("  s_sub_u32 s33, s2, s35")
    A("  s_lshr_b32 s32, s32, 6                    ; wave")
    A("  s_lshl_b32 s57, s33, 7")
    A("  s_lshl_b32 s58, s34, 7")
    A(f"  s_add_u32 s58, s58, {E2}")
    A("  s_cmp_ge_u32 s32, 2")
    A("  s_cbranch_scc1 L_p2")
    ACC = 16; R = 24

    def common_setup():
        A("  s_mov_b32 s41, 0x05040100")
        A("  s_mov_b32 s42, 0x07060302")
        A("  v_bfe_u32 v6, v1, 4, 1")
        A("  v_lshrrev_b32 v7, 5, v1")
        for t in range(8): A(f"  v_mov_b32 v{ACC+t}, 0")
        A("  v_lshlrev_b32 v4, 6, v4")
        A("  v_lshl_add_u32 v4, v7, 5, v4")
        A("  v_lshl_add_u32 v4, v6, 4, v4")
        A(f"  s_lshl_b32 s44, s33, 13")
        A(f"  s_add_u32 s44, s44, {MB1}")

    def reduce(dpps):
        A("  s_nop 0")
        for t in range(4): A(f"  v_permlane32_swap_b32 v{ACC+t}, v{ACC+4+t}")
        for t in range(4): A(f"  v_add_f32 v{ACC+t}, v{ACC+t}, v{ACC+4+t}")
        A("  s_nop 0")
        for t in range(2): A(f"  v_permlane16_swap_b32 v{ACC+t}, v{ACC+2+t}")
        for t in range(2): A(f"  v_add_f32 v{ACC+t}, v{ACC+t}, v{ACC+2+t}")
        for n, rot in enumerate(dpps):
            last = n == len(dpps) - 1
            A("  s_nop 0")
            for t in range(2):
                dst = (R + 2*t) if last else ACC + t
                A(f"  v_add_f32_dpp v{dst}, v{ACC+t}, v{ACC+t} row_ror:{rot} row_mask:0xf bank_mask:0xf")
        A("  s_mov_b64 exec, s[62:63]")

    W0 = 56; XR = 40; TP = 32
    if mm == 0:
        A("  s_and_b32 s38, s34, 3                     ; k4")
        A("  s_lshr_b32 s39, s34, 2                    ; m")
    else:
        A("  s_lshr_b32 s38, s34, 1                    ; k4")
        A("  s_and_b32 s39, s34, 1                     ; m")
    A(f"  s_mul_i32 s37, s38, {256*7168}")
    A("  s_lshl_b32 s43, s33, 8")
    A("  s_add_u32 s37, s37, s43")
    A("  s_lshl_b32 s43, s32, 7")
    A("  s_add_u32 s37, s37, s43")
    A("  v_lshrrev_b32 v3, 3, v1")
    A("  v_and_b32 v4, 7, v1")
    A(f"  v_mul_u32_u24 v2, {32*7168}, v3")
    A("  v_lshl_add_u32 v2, v4, 4, v2")
    A("  v_lshlrev_b32 v3, 6, v3")
    A("  s_lshl_b32 s43, s38, 9")
    A("  s_cmp_lg_u32 s39, 0")
    A("  s_waitcnt lgkmcnt(0)")
    A("  s_cselect_b32 s8, s12, s8")
    A("  s_cselect_b32 s9, s13, s9")
    for q in range(4):
        A(f"  buffer_load_dwordx4 v[{XR+4*q}:{XR+4*q+3}], v3, s[4:7], s43 offen offset:{16*q}")
    for i in range(32):
        A(f"  buffer_load_dwordx4 v[{W0+4*i}:{W0+4*i+3}], v2, s[8:11], s37 offen")
        if i < 31: A("  s_add_u32 s37, s37, 7168")
        if i == 1:
            A("  s_load_dword s40, s[28:29], s57")
            A("  s_load_dword s56, s[28:29], s58")
        if i + 1 == b1 and b1 < 32:
            A("  s_waitcnt lgkmcnt(0)")
            A("  s_barrier                                 ; B1")
    stamp(1)
    if b1 >= 32:
        A("  s_waitcnt lgkmcnt(0)")
        A("  s_barrier")
    common_setup()
    A("  s_lshl_b32 s45, s39, 2")
    A("  s_add_u32 s45, s45, s38")
    A("  s_lshl_b32 s45, s45, 10")
    A("  s_add_u32 s45, s45, s44")
    A("  s_lshl_b32 s46, s32, 9")
    A("  s_add_u32 s45, s45, s46")
    A("  s_mul_i32 s50, s32, 28")
    A("  s_add_u32 s50, s50, s33")
    A(f"  s_mul_i32 s49, s34, {28*S}")
    A("  s_lshl_b32 s51, s50, 5")
    A("  s_add_u32 s49, s49, s51")
    A(f"  s_add_u32 s49, s49, {MB2}")
    A("  v_lshrrev_b32 v13, 1, v1")
    A("  v_and_b32 v14, 1, v1")
    A("  v_lshlrev_b32 v13, 10, v13")
    A("  v_lshl_add_u32 v13, v14, 4, v13")
    A("  v_lshl_add_u32 v14, v14, 1, v7")
    A("  v_lshlrev_b32 v14, 1, v14")
    A("  s_lshl_b32 s48, s34, 8")
    A("  s_lshl_b32 s51, s50, 3")
    A("  s_add_u32 s48, s48, s51")
    A("  v_mov_b32 v8, 0")
    A("  v_mov_b32 v9, 0")
    A("  s_add_u32 s40, s40, 1                     ; tag 1")
    A("  s_add_u32 s56, s56, 1                     ; tag 2")
    A(f"  v_mov_b32 v{R+1}, s40")
    A(f"  v_mov_b32 v{R+3}, s40")
    A("  s_mov_b32 s62, 0x00ff00ff")
    A("  s_mov_b32 s63, 0x00ff00ff")
    for p in range(16):
        A(f"  s_waitcnt vmcnt({30-2*p})")
        a, b = W0 + 8*p, W0 + 8*p + 4
        for q in range(4):
            A(f"  v_perm_b32 v{TP+2*q}, v{b+q}, v{a+q}, s41")
            A(f"  v_perm_b32 v{TP+2*q+1}, v{b+q}, v{a+q}, s42")
        for t in range(8):
            A(f"  v_dot2c_f32_bf16 v{ACC+t}, v{TP+t}, v{XR+p}")
    stamp(2)
    reduce([8])
    A(f"  buffer_store_dwordx4 v[{R}:{R+3}], v4, s[28:31], s45 offen sc1")
    A("  s_mov_b64 exec, -1")
    A("  s_barrier")
    A("  s_barrier")
    stamp(4)
    A("  s_cmp_ge_u32 s50, 32")
    A("  s_cbranch_scc1 L_fin")
    M0 = 64
    A("  s_mov_b32 s59, 0")
    A("  s_mov_b32 exec_hi, 0x00ffffff")
    def issue(s): A(f"  buffer_load_dwordx4 v[{M0+4*s}:{M0+4*s+3}], v13, s[28:31], s49 offen sc1")
    for s in range(K2-1):
        issue(s)
        if st2: A(f"  s_sleep {st2}")
    A("L_poll2:")
    for s in range(K2):
        issue((s + K2 - 1) % K2)
        r = M0 + 4*s
        A(f"  s_waitcnt vmcnt({K2-1})")
        A(f"  v_cmp_ne_u32 vcc, s56, v{r+1}")
        A(f"  v_cmp_ne_u32 s[60:61], s56, v{r+3}")
        A(f"  v_mov_b32 v8, v{r}")
        A(f"  v_mov_b32 v9, v{r+2}")
        A("  s_or_b64 exec, s[60:61], vcc")
        A("  s_cbranch_scc0 L_got2")
    A("  s_add_u32 s59, s59, 1")
    A(f"  s_cmp_eq_u32 s59, {NA // K2}")
    A(f"  s_cselect_b32 s51, {MB2B - MB2}, 0")
    A("  s_add_u32 s49, s49, s51")
    A("  s_cmp_lt_u32 s59, 0x400000")
    A("  s_cbranch_scc1 L_poll2")
    A("L_got2:")
    A("  s_mov_b64 exec, -1")
    stamp(5)
    if stamps: A("  s_add_u32 s79, s59, 1")
    A("  v_permlane32_swap_b32 v8, v9")
    A("  v_add_f32 v8, v8, v9")
    A("  v_mov_b32 v9, v8")
    A("  s_nop 1")
    A("  v_permlane16_swap_b32 v8, v9")
    A("  v_add_f32 v8, v8, v9")
    for rot in (8, 4, 2):
        A("  s_nop 1")
        A(f"  v_add_f32_dpp v8, v8, v8 row_ror:{rot} row_mask:0xf bank_mask:0xf")
    A("  s_mov_b32 exec_lo, 3")
    A("  s_mov_b32 exec_hi, 3")
    A("  v_cvt_pk_bf16_f32 v15, v8, v8")
    A("  buffer_store_short v15, v14, s[20:23], s48 offen")
    A("  s_cmp_lg_u32 s50, 0")
    A("  s_cbranch_scc1 L_fin")
    A("  s_mov_b64 exec, 1")
    A("  v_mov_b32 v14, 0")
    A("  v_mov_b32 v15, s56")
    A("  buffer_store_dword v15, v14, s[28:31], s58 offen")
    A("  s_branch L_fin")
    A("L_p2:")
    WD = 48; PP = 80; H = 40; G0 = 112
    A("  s_sub_u32 s36, s32, 2                     ; j")
    A(f"  s_mul_i32 s37, s33, {128*2048}")
    A("  s_lshl_b32 s38, s34, 8")
    A("  s_add_u32 s37, s37, s38")
    A("  s_lshl_b32 s38, s36, 6")
    A("  s_add_u32 s37, s37, s38")
    A("  v_lshrrev_b32 v3, 2, v1")
    A("  v_and_b32 v4, 3, v1")
    A("  v_lshlrev_b32 v2, 14, v3")
    A("  v_lshl_add_u32 v2, v4, 4, v2")
    A("  v_lshlrev_b32 v3, 4, v3")
    common_setup()
    A("  s_mul_i32 s52, s34, 28")
    A("  s_add_u32 s52, s52, s33")
    A("  s_lshl_b32 s52, s52, 10")
    A("  s_lshl_b32 s46, s36, 8")
    A("  s_add_u32 s52, s52, s46")
    A(f"  s_add_u32 s53, s52, {MB2B}")
    A(f"  s_add_u32 s52, s52, {MB2}")
    A("  s_add_u32 s46, s46, s44")
    A("  s_add_u32 s47, s46, 4096                  ; u partials")
    A("  v_lshrrev_b32 v5, 4, v1")
    A("  v_lshlrev_b32 v5, 10, v5")
    A("  v_and_b32 v12, 15, v1")
    A("  v_lshl_add_u32 v5, v12, 4, v5")
    A("  v_lshl_add_u32 v12, v12, 1, v7")
    A("  s_lshl_b32 s48, s36, 5")
    A("  v_add_lshl_u32 v12, v12, s48, 1")
    c1 = -2.0 * math.log2(math.e) * math.sqrt(2.0 / math.pi); c2 = c1 * 0.044715
    A(f"  v_mov_b32 v10, {f2u(c1):#x}")
    A("  v_mov_b32 v8, 0")
    A("  s_mov_b32 s62, 0x000f000f")
    A("  s_mov_b32 s63, 0x000f000f")
    A("  s_mov_b32 s59, 0")
    A("  s_waitcnt lgkmcnt(0)")
    A("  s_load_dword s40, s[28:29], s57")
    A("  s_load_dword s56, s[28:29], s58")
    A("  s_waitcnt lgkmcnt(0)")
    A("  s_barrier                                 ; B1")
    for i in range(8):
        A(f"  buffer_load_dwordx4 v[{WD+4*i}:{WD+4*i+3}], v2, s[16:19], s37 offen offset:{(i&1)*2048}")
        if i & 1 and i < 7: A("  s_add_u32 s37, s37, 4096")
    stamp(1)
    A("  s_add_u32 s40, s40, 1")
    A("  s_add_u32 s56, s56, 1")
    A(f"  v_mov_b32 v{R+1}, s56")
    A(f"  v_mov_b32 v{R+3}, s56")
    A("  v_mov_b32 v9, s40")
    def perms(p):
        a, b = WD + 8*p, WD + 8*p + 4
        for q in range(4):
            A(f"  v_perm_b32 v{PP+8*p+2*q}, v{b+q}, v{a+q}, s41")
            A(f"  v_perm_b32 v{PP+8*p+2*q+1}, v{b+q}, v{a+q}, s42")
    for p in range(3):
        A(f"  s_waitcnt vmcnt({6-2*p})")
        perms(p)
    A("  s_waitcnt vmcnt(0)")
    stamp(2)
    A("  s_barrier                                 ; B2")
    def gl():
        A(f"  buffer_load_dwordx4 v[{G0}:{G0+3}], v5, s[28:31], s46 offen sc1")
        A(f"  buffer_load_dwordx4 v[{G0+4}:{G0+7}], v5, s[28:31], s47 offen sc1")
    gl()
    perms(3)
    A("  s_branch L_chk1")
    A("L_poll1:")
    gl()
    A("L_chk1:")
    A("  s_add_u32 s59, s59, 1")
    A("  s_waitcnt vmcnt(1)")
    A(f"  v_xor_b32 v32, s40, v{G0+1}")
    A(f"  v_xor_b32 v33, s40, v{G0+3}")
    A("  s_waitcnt vmcnt(0)")
    A(f"  v_xor_b32 v34, s40, v{G0+5}")
    A(f"  v_xor_b32 v35, s40, v{G0+7}")
    A("  v_or3_b32 v15, v32, v33, v34")
    A("  v_or_b32 v15, v15, v35")
    A("  v_cmp_ne_u32 vcc, 0, v15")
    A("  s_and_b64 exec, vcc, vcc")
    A("  s_cbranch_scc0 L_got1")
    A("  s_cmp_lt_u32 s59, 0x400000")
    A("  s_cbranch_scc1 L_poll1")
    A("L_got1:")
    A("  s_mov_b64 exec, -1")
    stamp(3)
    if stamps: A("  s_mov_b32 s78, s59")
    A(f"  v_permlane32_swap_b32 v{G0}, v{G0+2}")
    A(f"  v_permlane32_swap_b32 v{G0+4}, v{G0+6}")
    A(f"  v_add_f32 v32, v{G0}, v{G0+2}")
    A(f"  v_add_f32 v34, v{G0+4}, v{G0+6}")
    A("  v_mov_b32 v33, v32")
    A("  v_mov_b32 v35, v34")
    A("  s_nop 0")
    A("  v_permlane16_swap_b32 v32, v33")
    A("  v_permlane16_swap_b32 v34, v35")
    A("  v_add_f32 v32, v32, v33")
    A("  v_add_f32 v34, v34, v35")
    A("  v_cvt_pk_bf16_f32 v32, v32, v34")
    A("  v_lshlrev_b32 v36, 16, v32")
    A("  v_and_b32 v34, 0xffff0000, v32")
    A("  v_mul_f32 v15, v36, v36")
    A(f"  v_fmac_f32 v10, {f2u(c2):#x}, v15")
    A("  v_mul_f32 v10, v10, v36")
    A("  v_exp_f32 v10, v10")
    A("  s_nop 0")
    A("  v_add_f32 v10, 1.0, v10")
    A("  v_rcp_f32 v10, v10")
    A("  s_nop 0")
    A("  v_mul_f32 v10, v10, v36")
    A("  v_cvt_pk_bf16_f32 v10, v10, v10")
    A("  v_lshlrev_b32 v10, 16, v10")
    A("  v_mul_f32 v10, v10, v34")
    A("  v_cvt_pk_bf16_f32 v10, v10, v10")
    A("  ds_write_b16 v12, v10")
    A("  s_waitcnt lgkmcnt(0)")
    A("  s_barrier                                 ; B3")
    A(f"  ds_read_b128 v[{H}:{H+3}], v3")
    A("  s_waitcnt lgkmcnt(0)")
    for p in range(4):
        for t in range(8):
            A(f"  v_dot2c_f32_bf16 v{ACC+t}, v{PP+8*p+t}, v{H+p}")
    reduce([8, 4])
    A(f"  buffer_store_dwordx4 v[{R}:{R+3}], v4, s[28:31], s52 offen")
    A(f"  buffer_store_dwordx4 v[{R}:{R+3}], v4, s[28:31], s53 offen sc1")
    stamp(4)
    A("  s_lshl_b32 s51, s34, 2")
    A("  s_add_u32 s51, s51, s36")
    A("  s_cmp_lg_u32 s51, 0")
    A("  s_cbranch_scc1 L_fin")
    A("  s_mov_b64 exec, 1")
    A("  buffer_store_dword v9, v8, s[28:31], s57 offen sc1")
    A("L_fin:")
    if stamps:
        stamp(6)
        A("  s_waitcnt lgkmcnt(0)")
        A("  s_mul_i32 s35, s2, 6")
        A("  s_add_u32 s35, s35, s32")
        A("  s_lshl_b32 s35, s35, 6")
        A(f"  s_add_u32 s35, s35, {STO}")
        A("  s_mov_b64 exec, 1")
        for k in range(16): A(f"  v_mov_b32 v{128+k}, s{64+k}")
        A("  v_mov_b32 v15, 0")
        for k in range(4): A(f"  buffer_store_dwordx4 v[{128+4*k}:{131+4*k}], v15, s[28:31], s35 offen offset:{16*k}")
    A("L_end:")
    A("  s_endpgm")
    nv = 184
    A('.section .rodata,"a"'); A(".p2align 6"); A(f".amdhsa_kernel {name}")
    A(f"  .amdhsa_next_free_vgpr {nv}")
    A(f"  .amdhsa_next_free_sgpr {80 if stamps else 64}")
    A(f"  .amdhsa_accum_offset {nv}")
    A("  .amdhsa_group_segment_fixed_size 0")
    A("  .amdhsa_kernarg_size 56")
    A("  .amdhsa_user_sgpr_count 2")
    A("  .amdhsa_user_sgpr_kernarg_segment_ptr 1")
    A("  .amdhsa_system_sgpr_workgroup_id_x 1")
    A("  .amdhsa_float_denorm_mode_32 3")
    A(".end_amdhsa_kernel")
    return "\n".join(o) + "\n"

if __name__ == "__main__":
    ap = argparse.ArgumentParser()
    for k, d in dict(stamps=0, dly=6, K2=2, st2=1, NA=300, cmap=0, mm=1, b1=32).items():
        ap.add_argument("--"+k, type=int, default=d)
    ap.add_argument("-o", default="-")
    a = vars(ap.parse_args()); out = a.pop("o")
    s = gen(**a)
    if out == "-": sys.stdout.write(s)
    else: open(out, "w").write(s)
```

```python
import sys, argparse, math, struct
f2u = lambda f: struct.unpack("<I", struct.pack("<f", f))[0]

def gen(stamps=0, name="standalone__glu_gated_geglu__decode_kernel", dly=6, K2=2, st2=1, NA=80, cmap=0, mm=1, b1=32, NB=32, ND=8, cpf=0):
    D, DF = 1024, 3584
    N, T = 224, 384
    S = 1024
    E1, E2 = 0, 28*128
    MB2 = 8192; MB2B = MB2 + 224*S; MB1 = MB2B + 224*S; WSB = MB1 + 224*S
    STO = 2 << 20
    o = []; A = o.append
    for line in """GEGLU decode:  out = (gelu_tanh(x@Wg) * (x@Wu)) @ Wd      (bf16 in/out, fp32 accumulate)   -- one launch
workgroup (c = id>>3, k = id&7), c = 128-wide f tile (28), k = 0..7; 6 waves:
  waves 0-1: partial of g (k even) or u (k odd) for f tile c over rows d = (k>>1)*256..+255 -> hand-off 1 (group c, 8 workgroups)
             afterwards some of them reduce the output partials of slice k
  waves 2-5: prefetch w_down rows of f tile c x columns k*128..+127 into registers; gather the 4+4 partials,
             h = bf16(bf16(gelu(bf16 g)) * bf16 u) -> LDS; w_down tile . h -> hand-off 2 (slice k, 28 workgroups)
hand-offs go through d_ws as 16-byte granules {f32, tag, f32, tag}; tag = epoch word + 1 (epoch words live in d_ws and only
tell this launch's granules from older contents; they are advanced once every reader has read them).
hand-off 1: sc1 stores + sc1 loads.  hand-off 2: copy A (plain store, seen at once by workgroups behind the same L2) and
copy B (sc1 store, seen under any placement); a reducer that does not see copy A falls back to copy B.""".split("\n"):
        A("; " + line)
    A(f"; @launch grid=({N},1,1) block=({T},1,1) lds=256")
    A('.amdgcn_target "amdgcn-amd-amdhsa--gfx950"')
    A(".text"); A(f".globl {name}"); A(".p2align 8"); A(f".type {name},@function"); A(f"{name}:")
    A(f"  s_cmp_ge_u32 s2, {N}")
    A("  s_cbranch_scc1 L_end")
    for i, r, nm in [(1,8,"w_gate"),(2,12,"w_up"),(0,4,"x"),(3,16,"w_down"),(6,28,"ws"),(4,20,"out")]:
        A(f"  s_load_dwordx2 s[{r}:{r+1}], s[0:1], {i*8}        ; {nm}")
    def stamp(i):
        if stamps: A(f"  s_memrealtime s[{64+2*i}:{65+2*i}]")
    if stamps:
        for i in range(16): A(f"  s_mov_b32 s{64+i}, 0")
    stamp(0)
    for r, sz in [(4,2048),(8,D*DF*2),(12,D*DF*2),(16,D*DF*2),(20,2048),(28,(STO + (1<<20)) if stamps else WSB)]:
        A(f"  s_mov_b32 s{r+2}, {sz}")
        A(f"  s_mov_b32 s{r+3}, 0x00020000")
    A("  v_readfirstlane_b32 s32, v0")
    A("  v_and_b32 v1, 63, v0                      ; lane")
    if cmap == 0:
        A("  s_and_b32 s34, s2, 7                      ; k")
        A("  s_lshr_b32 s33, s2, 3                     ; c")
    else:
        A(f"  s_mov_b32 s35, {(1<<32)//28+1}")
        A("  s_mul_hi_u32 s34, s2, s35")
        A("  s_mul_i32 s35, s34, 28")
        A("  s_sub_u32 s33, s2, s35")
    A("  s_lshr_b32 s32, s32, 6                    ; wave")
    A("  s_lshl_b32 s57, s33, 7")
    A("  s_lshl_b32 s58, s34, 7")
    A(f"  s_add_u32 s58, s58, {E2}")
    A("  s_cmp_ge_u32 s32, 2")
    A("  s_cbranch_scc1 L_p2")
    ACC = 16; R = 24

    def common_setup():
        A("  s_mov_b32 s41, 0x05040100")
        A("  s_mov_b32 s42, 0x07060302")
        A("  v_bfe_u32 v6, v1, 4, 1")
        A("  v_lshrrev_b32 v7, 5, v1")
        for t in range(8): A(f"  v_mov_b32 v{ACC+t}, 0")
        A("  v_lshlrev_b32 v4, 6, v4")
        A("  v_lshl_add_u32 v4, v7, 5, v4")
        A("  v_lshl_add_u32 v4, v6, 4, v4")
        A(f"  s_lshl_b32 s44, s33, 13")
        A(f"  s_add_u32 s44, s44, {MB1}")

    def reduce(dpps):
        A("  s_nop 0")
        for t in range(4): A(f"  v_permlane32_swap_b32 v{ACC+t}, v{ACC+4+t}")
        for t in range(4): A(f"  v_add_f32 v{ACC+t}, v{ACC+t}, v{ACC+4+t}")
        A("  s_nop 0")
        for t in range(2): A(f"  v_permlane16_swap_b32 v{ACC+t}, v{ACC+2+t}")
        for t in range(2): A(f"  v_add_f32 v{ACC+t}, v{ACC+t}, v{ACC+2+t}")
        for n, rot in enumerate(dpps):
            last = n == len(dpps) - 1
            A("  s_nop 0")
            for t in range(2):
                dst = (R + 2*t) if last else ACC + t
                A(f"  v_add_f32_dpp v{dst}, v{ACC+t}, v{ACC+t} row_ror:{rot} row_mask:0xf bank_mask:0xf")
        A("  s_mov_b64 exec, s[62:63]")

    W0 = 56; XR = 40; TP = 32
    if mm == 0:
        A("  s_and_b32 s38, s34, 3                     ; k4")
        A("  s_lshr_b32 s39, s34, 2                    ; m")
    else:
        A("  s_lshr_b32 s38, s34, 1                    ; k4")
        A("  s_and_b32 s39, s34, 1                     ; m")
    A(f"  s_mul_i32 s37, s38, {256*7168}")
    A("  s_lshl_b32 s43, s33, 8")
    A("  s_add_u32 s37, s37, s43")
    A("  s_lshl_b32 s43, s32, 7")
    A("  s_add_u32 s37, s37, s43")
    A("  v_lshrrev_b32 v3, 3, v1")
    A("  v_and_b32 v4, 7, v1")
    A(f"  v_mul_u32_u24 v2, {32*7168}, v3")
    A("  v_lshl_add_u32 v2, v4, 4, v2")
    A("  v_lshlrev_b32 v3, 6, v3")
    A("  s_lshl_b32 s43, s38, 9")
    A("  s_cmp_lg_u32 s39, 0")
    A("  s_waitcnt lgkmcnt(0)")
    A("  s_cselect_b32 s8, s12, s8")
    A("  s_cselect_b32 s9, s13, s9")
    for q in range(4):
        A(f"  buffer_load_dwordx4 v[{XR+4*q}:{XR+4*q+3}], v3, s[4:7], s43 offen offset:{16*q}")
    def wl(i):
        r = W0 + 4*(i % NB)
        A(f"  buffer_load_dwordx4 v[{r}:{r+3}], v2, s[8:11], s37 offen")
        if i < 31: A("  s_add_u32 s37, s37, 7168")
    def bar1():
        stamp(1)
        A("  s_waitcnt lgkmcnt(0)")
        A("  s_barrier")
    for i in range(NB):
        wl(i)
        if i == 1:
            A("  s_load_dword s40, s[28:29], s57")
            A("  s_load_dword s56, s[28:29], s58")
    if NB == 32: bar1()
    else: A("  s_waitcnt lgkmcnt(0)")
    common_setup()
    A("  s_lshl_b32 s45, s39, 2")
    A("  s_add_u32 s45, s45, s38")
    A("  s_lshl_b32 s45, s45, 10")
    A("  s_add_u32 s45, s45, s44")
    A("  s_lshl_b32 s46, s32, 9")
    A("  s_add_u32 s45, s45, s46")
    A("  s_mul_i32 s50, s32, 28")
    A("  s_add_u32 s50, s50, s33")
    A(f"  s_mul_i32 s49, s34, {28*S}")
    A("  s_lshl_b32 s51, s50, 5")
    A("  s_add_u32 s49, s49, s51")
    A(f"  s_add_u32 s49, s49, {MB2}")
    A("  v_lshrrev_b32 v13, 1, v1")
    A("  v_and_b32 v14, 1, v1")
    A("  v_lshlrev_b32 v13, 10, v13")
    A("  v_lshl_add_u32 v13, v14, 4, v13")
    A("  v_lshl_add_u32 v14, v14, 1, v7")
    A("  v_lshlrev_b32 v14, 1, v14")
    A("  s_lshl_b32 s48, s34, 8")
    A("  s_lshl_b32 s51, s50, 3")
    A("  s_add_u32 s48, s48, s51")
    A("  v_mov_b32 v8, 0")
    A("  v_mov_b32 v9, 0")
    A("  s_add_u32 s40, s40, 1                     ; tag 1")
    A("  s_add_u32 s56, s56, 1                     ; tag 2")
    A(f"  v_mov_b32 v{R+1}, s40")
    A(f"  v_mov_b32 v{R+3}, s40")
    A("  s_mov_b32 s62, 0x00ff00ff")
    A("  s_mov_b32 s63, 0x00ff00ff")
    issued = NB
    for p in range(16):
        A(f"  s_waitcnt vmcnt({issued - 2*p - 2})")
        a, b = W0 + 4*((2*p) % NB), W0 + 4*((2*p+1) % NB)
        for q in range(4):
            A(f"  v_perm_b32 v{TP+2*q}, v{b+q}, v{a+q}, s41")
            A(f"  v_perm_b32 v{TP+2*q+1}, v{b+q}, v{a+q}, s42")
        if issued < 32:
            wl(issued); wl(issued + 1); issued += 2
            if issued == 32: bar1()
        for t in range(8):
            A(f"  v_dot2c_f32_bf16 v{ACC+t}, v{TP+t}, v{XR+p}")
    stamp(2)
    reduce([8])
    A(f"  buffer_store_dwordx4 v[{R}:{R+3}], v4, s[28:31], s45 offen sc1")
    A("  s_mov_b64 exec, -1")
    A("  s_barrier")
    A("  s_barrier")
    stamp(4)
    A("  s_cmp_ge_u32 s50, 32")
    A("  s_cbranch_scc1 L_fin")
    M0 = 64
    A("  s_mov_b32 s59, 0")
    A("  s_mov_b32 exec_hi, 0x00ffffff")
    def issue(s): A(f"  buffer_load_dwordx4 v[{M0+4*s}:{M0+4*s+3}], v13, s[28:31], s49 offen sc1")
    for s in range(K2-1):
        issue(s)
        if st2: A(f"  s_sleep {st2}")
    A("L_poll2:")
    for s in range(K2):
        issue((s + K2 - 1) % K2)
        r = M0 + 4*s
        A(f"  s_waitcnt vmcnt({K2-1})")
        A(f"  v_cmp_ne_u32 vcc, s56, v{r+1}")
        A(f"  v_cmp_ne_u32 s[60:61], s56, v{r+3}")
        A(f"  v_mov_b32 v8, v{r}")
        A(f"  v_mov_b32 v9, v{r+2}")
        A("  s_or_b64 exec, s[60:61], vcc")
        A("  s_cbranch_scc0 L_got2")
    A("  s_add_u32 s59, s59, 1")
    A(f"  s_cmp_eq_u32 s59, {NA // K2}")
    A(f"  s_cselect_b32 s51, {MB2B - MB2}, 0")
    A("  s_add_u32 s49, s49, s51")
    A("  s_cmp_lt_u32 s59, 0x400000")
    A("  s_cbranch_scc1 L_poll2")
    A("L_got2:")
    A("  s_mov_b64 exec, -1")
    stamp(5)
    if stamps: A("  s_add_u32 s79, s59, 1")
    A("  v_permlane32_swap_b32 v8, v9")
    A("  v_add_f32 v8, v8, v9")
    A("  v_mov_b32 v9, v8")
    A("  s_nop 1")
    A("  v_permlane16_swap_b32 v8, v9")
    A("  v_add_f32 v8, v8, v9")
    for rot in (8, 4, 2):
        A("  s_nop 1")
        A(f"  v_add_f32_dpp v8, v8, v8 row_ror:{rot} row_mask:0xf bank_mask:0xf")
    A("  s_mov_b32 exec_lo, 3")
    A("  s_mov_b32 exec_hi, 3")
    A("  v_cvt_pk_bf16_f32 v15, v8, v8")
    A("  buffer_store_short v15, v14, s[20:23], s48 offen")
    A("  s_cmp_lg_u32 s50, 0")
    A("  s_cbranch_scc1 L_fin")
    A("  s_mov_b64 exec, 1")
    A("  v_mov_b32 v14, 0")
    A("  v_mov_b32 v15, s56")
    A("  buffer_store_dword v15, v14, s[28:31], s58 offen")
    A("  s_branch L_fin")
    A("L_p2:")
    WD = 48; PP = 80; H = 40; G0 = 112
    A("  s_sub_u32 s36, s32, 2                     ; j")
    if cpf:
        A("  s_getpc_b64 s[60:61]")
        A("L_pc:")
        A(f"  s_sub_u32 s60, s60, L_pc-{name}")
        A("  s_subb_u32 s61, s61, 0")
        A("  v_lshlrev_b32 v2, 7, v1")
        A(f"  v_min_u32 v2, L_end-{name}, v2")
        A("  s_cmp_lg_u32 s36, 0")
        A("  s_cbranch_scc1 L_nopf")
        A("  global_load_dword v47, v2, s[60:61]")
        A("L_nopf:")
    A(f"  s_mul_i32 s37, s33, {128*2048}")
    A("  s_lshl_b32 s38, s34, 8")
    A("  s_add_u32 s37, s37, s38")
    A("  s_lshl_b32 s38, s36, 6")
    A("  s_add_u32 s37, s37, s38")
    A("  v_lshrrev_b32 v3, 2, v1")
    A("  v_and_b32 v4, 3, v1")
    A("  v_lshlrev_b32 v2, 14, v3")
    A("  v_lshl_add_u32 v2, v4, 4, v2")
    A("  v_lshlrev_b32 v3, 4, v3")
    common_setup()
    A("  s_mul_i32 s52, s34, 28")
    A("  s_add_u32 s52, s52, s33")
    A("  s_lshl_b32 s52, s52, 10")
    A("  s_lshl_b32 s46, s36, 8")
    A("  s_add_u32 s52, s52, s46")
    A(f"  s_add_u32 s53, s52, {MB2B}")
    A(f"  s_add_u32 s52, s52, {MB2}")
    A("  s_add_u32 s46, s46, s44")
    A("  s_add_u32 s47, s46, 4096                  ; u partials")
    A("  v_lshrrev_b32 v5, 4, v1")
    A("  v_lshlrev_b32 v5, 10, v5")
    A("  v_and_b32 v12, 15, v1")
    A("  v_lshl_add_u32 v5, v12, 4, v5")
    A("  v_lshl_add_u32 v12, v12, 1, v7")
    A("  s_lshl_b32 s48, s36, 5")
    A("  v_add_lshl_u32 v12, v12, s48, 1")
    c1 = -2.0 * math.log2(math.e) * math.sqrt(2.0 / math.pi); c2 = c1 * 0.044715
    A(f"  v_mov_b32 v10, {f2u(c1):#x}")
    A("  v_mov_b32 v8, 0")
    A("  s_mov_b32 s62, 0x000f000f")
    A("  s_mov_b32 s63, 0x000f000f")
    A("  s_mov_b32 s59, 0")
    A("  s_waitcnt lgkmcnt(0)")
    A("  s_load_dword s40, s[28:29], s57")
    A("  s_load_dword s56, s[28:29], s58")
    A("  s_waitcnt lgkmcnt(0)")
    A("  s_barrier                                 ; B1")
    def dl(i):
        A(f"  buffer_load_dwordx4 v[{WD+4*i}:{WD+4*i+3}], v2, s[16:19], s37 offen offset:{(i&1)*2048}")
        if i & 1 and i < 7: A("  s_add_u32 s37, s37, 4096")
    for i in range(ND): dl(i)
    stamp(1)
    A("  s_add_u32 s40, s40, 1")
    A("  s_add_u32 s56, s56, 1")
    A(f"  v_mov_b32 v{R+1}, s56")
    A(f"  v_mov_b32 v{R+3}, s56")
    A("  v_mov_b32 v9, s40")
    def perms(p):
        a, b = WD + 8*p, WD + 8*p + 4
        for q in range(4):
            A(f"  v_perm_b32 v{PP+8*p+2*q}, v{b+q}, v{a+q}, s41")
            A(f"  v_perm_b32 v{PP+8*p+2*q+1}, v{b+q}, v{a+q}, s42")
    di = ND
    for p in range(3):
        A(f"  s_waitcnt vmcnt({di-2*p-2})")
        if di < 8:
            dl(di); dl(di+1); di += 2
        perms(p)
    A("  s_waitcnt vmcnt(0)")
    stamp(2)
    A("  s_barrier                                 ; B2")
    def gl():
        A(f"  buffer_load_dwordx4 v[{G0}:{G0+3}], v5, s[28:31], s46 offen sc1")
        A(f"  buffer_load_dwordx4 v[{G0+4}:{G0+7}], v5, s[28:31], s47 offen sc1")
    gl()
    perms(3)
    A("  s_branch L_chk1")
    A("L_poll1:")
    gl()
    A("L_chk1:")
    A("  s_add_u32 s59, s59, 1")
    A("  s_waitcnt vmcnt(1)")
    A(f"  v_xor_b32 v32, s40, v{G0+1}")
    A(f"  v_xor_b32 v33, s40, v{G0+3}")
    A("  s_waitcnt vmcnt(0)")
    A(f"  v_xor_b32 v34, s40, v{G0+5}")
    A(f"  v_xor_b32 v35, s40, v{G0+7}")
    A("  v_or3_b32 v15, v32, v33, v34")
    A("  v_or_b32 v15, v15, v35")
    A("  v_cmp_ne_u32 vcc, 0, v15")
    A("  s_and_b64 exec, vcc, vcc")
    A("  s_cbranch_scc0 L_got1")
    A("  s_cmp_lt_u32 s59, 0x400000")
    A("  s_cbranch_scc1 L_poll1")
    A("L_got1:")
    A("  s_mov_b64 exec, -1")
    stamp(3)
    if stamps: A("  s_mov_b32 s78, s59")
    A(f"  v_permlane32_swap_b32 v{G0}, v{G0+2}")
    A(f"  v_permlane32_swap_b32 v{G0+4}, v{G0+6}")
    A(f"  v_add_f32 v32, v{G0}, v{G0+2}")
    A(f"  v_add_f32 v34, v{G0+4}, v{G0+6}")
    A("  v_mov_b32 v33, v32")
    A("  v_mov_b32 v35, v34")
    A("  s_nop 0")
    A("  v_permlane16_swap_b32 v32, v33")
    A("  v_permlane16_swap_b32 v34, v35")
    A("  v_add_f32 v32, v32, v33")
    A("  v_add_f32 v34, v34, v35")
    A("  v_cvt_pk_bf16_f32 v32, v32, v34")
    A("  v_lshlrev_b32 v36, 16, v32")
    A("  v_and_b32 v34, 0xffff0000, v32")
    A("  v_mul_f32 v15, v36, v36")
    A(f"  v_fmac_f32 v10, {f2u(c2):#x}, v15")
    A("  v_mul_f32 v10, v10, v36")
    A("  v_exp_f32 v10, v10")
    A("  s_nop 0")
    A("  v_add_f32 v10, 1.0, v10")
    A("  v_rcp_f32 v10, v10")
    A("  s_nop 0")
    A("  v_mul_f32 v10, v10, v36")
    A("  v_cvt_pk_bf16_f32 v10, v10, v10")
    A("  v_lshlrev_b32 v10, 16, v10")
    A("  v_mul_f32 v10, v10, v34")
    A("  v_cvt_pk_bf16_f32 v10, v10, v10")
    A("  ds_write_b16 v12, v10")
    A("  s_waitcnt lgkmcnt(0)")
    A("  s_barrier                                 ; B3")
    A(f"  ds_read_b128 v[{H}:{H+3}], v3")
    A("  s_waitcnt lgkmcnt(0)")
    for p in range(4):
        for t in range(8):
            A(f"  v_dot2c_f32_bf16 v{ACC+t}, v{PP+8*p+t}, v{H+p}")
    reduce([8, 4])
    A(f"  buffer_store_dwordx4 v[{R}:{R+3}], v4, s[28:31], s52 offen")
    A(f"  buffer_store_dwordx4 v[{R}:{R+3}], v4, s[28:31], s53 offen sc1")
    stamp(4)
    A("  s_lshl_b32 s51, s34, 2")
    A("  s_add_u32 s51, s51, s36")
    A("  s_cmp_lg_u32 s51, 0")
    A("  s_cbranch_scc1 L_fin")
    A("  s_mov_b64 exec, 1")
    A("  buffer_store_dword v9, v8, s[28:31], s57 offen sc1")
    A("L_fin:")
    if stamps:
        stamp(6)
        A("  s_waitcnt lgkmcnt(0)")
        A("  s_mul_i32 s35, s2, 6")
        A("  s_add_u32 s35, s35, s32")
        A("  s_lshl_b32 s35, s35, 6")
        A(f"  s_add_u32 s35, s35, {STO}")
        A("  s_mov_b64 exec, 1")
        for k in range(16): A(f"  v_mov_b32 v{128+k}, s{64+k}")
        A("  v_mov_b32 v15, 0")
        for k in range(4): A(f"  buffer_store_dwordx4 v[{128+4*k}:{131+4*k}], v15, s[28:31], s35 offen offset:{16*k}")
    A("L_end:")
    A("  s_endpgm")
    nv = max(W0 + 4*NB, 120, 144 if stamps else 0)
    A('.section .rodata,"a"'); A(".p2align 6"); A(f".amdhsa_kernel {name}")
    A(f"  .amdhsa_next_free_vgpr {nv}")
    A(f"  .amdhsa_next_free_sgpr {80 if stamps else 64}")
    A(f"  .amdhsa_accum_offset {nv}")
    A("  .amdhsa_group_segment_fixed_size 0")
    A("  .amdhsa_kernarg_size 56")
    A("  .amdhsa_user_sgpr_count 2")
    A("  .amdhsa_user_sgpr_kernarg_segment_ptr 1")
    A("  .amdhsa_system_sgpr_workgroup_id_x 1")
    A("  .amdhsa_float_denorm_mode_32 3")
    A(".end_amdhsa_kernel")
    return "\n".join(o) + "\n"

if __name__ == "__main__":
    ap = argparse.ArgumentParser()
    for k, d in dict(stamps=0, dly=6, K2=2, st2=1, NA=80, cmap=0, mm=1, b1=32, NB=32, ND=8, cpf=0).items():
        ap.add_argument("--"+k, type=int, default=d)
    ap.add_argument("-o", default="-")
    a = vars(ap.parse_args()); out = a.pop("o")
    s = gen(**a)
    if out == "-": sys.stdout.write(s)
    else: open(out, "w").write(s)
```

```python
import sys, argparse, math, struct
f2u = lambda f: struct.unpack("<I", struct.pack("<f", f))[0]

def gen(stamps=0, name="standalone__glu_gated_geglu__decode_kernel", dly=6, K2=2, st2=1, NA=80, cmap=0, mm=1, b1=32, NB=32, ND=8, cpf=0, nob=0, prio=0, warm=0, al=0, p1prio=0, thr=0, eg=0, b1p=-1):
    D, DF = 1024, 3584
    N, T = 224, 384
    S = 1024
    E1, E2 = 0, 28*128
    MB2 = 8192; MB2B = MB2 + 224*S; MB1 = MB2B + 224*S; WSB = MB1 + 224*S
    STO = 2 << 20
    o = []; A = o.append
    for line in """GEGLU decode:  out = (gelu_tanh(x@Wg) * (x@Wu)) @ Wd      (bf16 in/out, fp32 accumulate)   -- one launch
workgroup (c = id>>3, k = id&7), c = 128-wide f tile (28), k = 0..7; 6 waves:
  waves 0-1: partial of g (k even) or u (k odd) for f tile c over rows d = (k>>1)*256..+255 -> hand-off 1 (group c, 8 workgroups)
             afterwards some of them reduce the output partials of slice k
  waves 2-5: prefetch w_down rows of f tile c x columns k*128..+127 into registers; gather the 4+4 partials,
             h = bf16(bf16(gelu(bf16 g)) * bf16 u) -> LDS; w_down tile . h -> hand-off 2 (slice k, 28 workgroups)
hand-offs go through d_ws as 16-byte granules {f32, tag, f32, tag}; tag = epoch word + 1 (epoch words live in d_ws and only
tell this launch's granules from older contents; they are advanced once every reader has read them).
hand-off 1: sc1 stores + sc1 loads.  hand-off 2: copy A (plain store, seen at once by workgroups behind the same L2) and
copy B (sc1 store, seen under any placement); a reducer that does not see copy A falls back to copy B.""".split("\n"):
        A("; " + line)
    A(f"; @launch grid=({N},1,1) block=({T},1,1) lds=256")
    A('.amdgcn_target "amdgcn-amd-amdhsa--gfx950"')
    A(".text"); A(f".globl {name}"); A(".p2align 8"); A(f".type {name},@function"); A(f"{name}:")
    A(f"  s_cmp_ge_u32 s2, {N}")
    A("  s_cbranch_scc1 L_end")
    for i, r, nm in [(1,8,"w_gate"),(2,12,"w_up"),(0,4,"x"),(3,16,"w_down"),(6,28,"ws"),(4,20,"out")]:
        A(f"  s_load_dwordx2 s[{r}:{r+1}], s[0:1], {i*8}        ; {nm}")
    def stamp(i):
        if stamps: A(f"  s_memrealtime s[{64+2*i}:{65+2*i}]")
    if stamps:
        for i in range(16): A(f"  s_mov_b32 s{64+i}, 0")
    stamp(0)
    for r, sz in [(4,2048),(8,D*DF*2),(12,D*DF*2),(16,D*DF*2),(20,2048),(28,(STO + (1<<20)) if stamps else WSB)]:
        A(f"  s_mov_b32 s{r+2}, {sz}")
        A(f"  s_mov_b32 s{r+3}, 0x00020000")
    A("  v_readfirstlane_b32 s32, v0")
    A("  v_and_b32 v1, 63, v0                      ; lane")
    if cmap == 0:
        A("  s_and_b32 s34, s2, 7                      ; k")
        A("  s_lshr_b32 s33, s2, 3                     ; c")
    else:
        A(f"  s_mov_b32 s35, {(1<<32)//28+1}")
        A("  s_mul_hi_u32 s34, s2, s35")
        A("  s_mul_i32 s35, s34, 28")
        A("  s_sub_u32 s33, s2, s35")
    A("  s_lshr_b32 s32, s32, 6                    ; wave")
    A("  s_lshl_b32 s57, s33, 7")
    A("  s_lshl_b32 s58, s34, 7")
    A(f"  s_add_u32 s58, s58, {E2}")
    A("  s_cmp_ge_u32 s32, 2")
    A("  s_cbranch_scc1 L_p2")
    ACC = 16; R = 24

    def common_setup():
        A("  s_mov_b32 s41, 0x05040100")
        A("  s_mov_b32 s42, 0x07060302")
        A("  v_bfe_u32 v6, v1, 4, 1")
        A("  v_lshrrev_b32 v7, 5, v1")
        for t in range(8): A(f"  v_mov_b32 v{ACC+t}, 0")
        A("  v_lshlrev_b32 v4, 6, v4")
        A("  v_lshl_add_u32 v4, v7, 5, v4")
        A("  v_lshl_add_u32 v4, v6, 4, v4")
        A(f"  s_lshl_b32 s44, s33, 13")
        A(f"  s_add_u32 s44, s44, {MB1}")

    def reduce(dpps):
        A("  s_nop 0")
        for t in range(4): A(f"  v_permlane32_swap_b32 v{ACC+t}, v{ACC+4+t}")
        for t in range(4): A(f"  v_add_f32 v{ACC+t}, v{ACC+t}, v{ACC+4+t}")
        A("  s_nop 0")
        for t in range(2): A(f"  v_permlane16_swap_b32 v{ACC+t}, v{ACC+2+t}")
        for t in range(2): A(f"  v_add_f32 v{ACC+t}, v{ACC+t}, v{ACC+2+t}")
        for n, rot in enumerate(dpps):
            last = n == len(dpps) - 1
            A("  s_nop 0")
            for t in range(2):
                dst = (R + 2*t) if last else ACC + t
                A(f"  v_add_f32_dpp v{dst}, v{ACC+t}, v{ACC+t} row_ror:{rot} row_mask:0xf bank_mask:0xf")
        A("  s_mov_b64 exec, s[62:63]")

    W0 = 56; XR = 40; TP = 32
    if mm == 0:
        A("  s_and_b32 s38, s34, 3                     ; k4")
        A("  s_lshr_b32 s39, s34, 2                    ; m")
    else:
        A("  s_lshr_b32 s38, s34, 1                    ; k4")
        A("  s_and_b32 s39, s34, 1                     ; m")
    A(f"  s_mul_i32 s37, s38, {256*7168}")
    A("  s_lshl_b32 s43, s33, 8")
    A("  s_add_u32 s37, s37, s43")
    A("  s_lshl_b32 s43, s32, 7")
    A("  s_add_u32 s37, s37, s43")
    A("  v_lshrrev_b32 v3, 3, v1")
    A("  v_and_b32 v4, 7, v1")
    A(f"  v_mul_u32_u24 v2, {32*7168}, v3")
    A("  v_lshl_add_u32 v2, v4, 4, v2")
    A("  v_lshlrev_b32 v3, 6, v3")
    A("  s_lshl_b32 s43, s38, 9")
    if p1prio: A(f"  s_setprio {p1prio}")
    A("  s_cmp_lg_u32 s39, 0")
    A("  s_waitcnt lgkmcnt(0)")
    A("  s_cselect_b32 s8, s12, s8")
    A("  s_cselect_b32 s9, s13, s9")
    for q in range(4):
        A(f"  buffer_load_dwordx4 v[{XR+4*q}:{XR+4*q+3}], v3, s[4:7], s43 offen offset:{16*q}")
    def wl(i):
        r = W0 + 4*(i % NB)
        A(f"  buffer_load_dwordx4 v[{r}:{r+3}], v2, s[8:11], s37 offen")
        if i < 31: A("  s_add_u32 s37, s37, 7168")
    def bar1():
        stamp(1)
        A("  s_waitcnt lgkmcnt(0)")
        A("  s_barrier")
    if thr:
        A("  s_and_b32 s55, s33, 3")
        A("  s_cmp_eq_u32 s55, 1")
        A("  s_cselect_b32 s55, 1, 0")
    def throttle(tag):
        A("  s_cmp_eq_u32 s55, 1")
        A(f"  s_cbranch_scc1 L_th{tag}")
        A(f"  s_waitcnt vmcnt({thr-2})")
        A(f"L_th{tag}:")
    for i in range(NB):
        if thr and i >= thr and i % 2 == 0: throttle(f"a{i}")
        wl(i)
        if i == 1:
            A("  s_load_dword s40, s[28:29], s57")
            A("  s_load_dword s56, s[28:29], s58")
    if NB == 32: bar1()
    else: A("  s_waitcnt lgkmcnt(0)")
    common_setup()
    A("  s_lshl_b32 s45, s39, 2")
    A("  s_add_u32 s45, s45, s38")
    A("  s_lshl_b32 s45, s45, 10")
    A("  s_add_u32 s45, s45, s44")
    A("  s_lshl_b32 s46, s32, 9")
    A("  s_add_u32 s45, s45, s46")
    A("  s_mul_i32 s50, s32, 28")
    A("  s_add_u32 s50, s50, s33")
    A(f"  s_mul_i32 s49, s34, {28*S}")
    A("  s_lshl_b32 s51, s50, 5")
    A("  s_add_u32 s49, s49, s51")
    A(f"  s_add_u32 s49, s49, {MB2}")
    A("  v_lshrrev_b32 v13, 1, v1")
    A("  v_and_b32 v14, 1, v1")
    A("  v_lshlrev_b32 v13, 10, v13")
    A("  v_lshl_add_u32 v13, v14, 4, v13")
    A("  v_lshl_add_u32 v14, v14, 1, v7")
    A("  v_lshlrev_b32 v14, 1, v14")
    A("  s_lshl_b32 s48, s34, 8")
    A("  s_lshl_b32 s51, s50, 3")
    A("  s_add_u32 s48, s48, s51")
    A("  v_mov_b32 v8, 0")
    A("  v_mov_b32 v9, 0")
    A("  s_add_u32 s40, s40, 1                     ; tag 1")
    A("  s_add_u32 s56, s56, 1                     ; tag 2")
    A(f"  v_mov_b32 v{R+1}, s40")
    A(f"  v_mov_b32 v{R+3}, s40")
    A("  s_mov_b32 s62, 0x00ff00ff")
    A("  s_mov_b32 s63, 0x00ff00ff")
    issued = NB
    for p in range(16):
        A(f"  s_waitcnt vmcnt({issued - 2*p - 2})")
        if al: A("  .p2align 3")
        a, b = W0 + 4*((2*p) % NB), W0 + 4*((2*p+1) % NB)
        for q in range(4):
            A(f"  v_perm_b32 v{TP+2*q}, v{b+q}, v{a+q}, s41")
            A(f"  v_perm_b32 v{TP+2*q+1}, v{b+q}, v{a+q}, s42")
        if issued < 32:
            if thr: throttle(f"b{p}")
            wl(issued); wl(issued + 1); issued += 2
            if issued == 32 and b1p < 0: bar1()
        if p == b1p: bar1()
        for t in range(8):
            A(f"  v_dot2c_f32_bf16 v{ACC+t}, v{TP+t}, v{XR+p}")
    stamp(2)
    reduce([8])
    A(f"  buffer_store_dwordx4 v[{R}:{R+3}], v4, s[28:31], s45 offen sc1")
    A("  s_mov_b64 exec, -1")
    A("  s_barrier")
    A("  s_barrier")
    stamp(4)
    A("  s_cmp_ge_u32 s50, 32")
    A("  s_cbranch_scc1 L_fin")
    M0 = 64
    A("  s_mov_b32 s59, 0")
    A("  s_mov_b32 exec_hi, 0x00ffffff")
    def issue(s): A(f"  buffer_load_dwordx4 v[{M0+4*s}:{M0+4*s+3}], v13, s[28:31], s49 offen sc1")
    for s in range(K2-1):
        issue(s)
        if st2: A(f"  s_sleep {st2}")
    A("L_poll2:")
    for s in range(K2):
        issue((s + K2 - 1) % K2)
        r = M0 + 4*s
        A(f"  s_waitcnt vmcnt({K2-1})")
        A(f"  v_cmp_ne_u32 vcc, s56, v{r+1}")
        A(f"  v_cmp_ne_u32 s[60:61], s56, v{r+3}")
        A(f"  v_mov_b32 v8, v{r}")
        A(f"  v_mov_b32 v9, v{r+2}")
        A("  s_or_b64 exec, s[60:61], vcc")
        A("  s_cbranch_scc0 L_got2")
    A("  s_add_u32 s59, s59, 1")
    A(f"  s_cmp_eq_u32 s59, {NA // K2}")
    A(f"  s_cselect_b32 s51, {MB2B - MB2}, 0")
    A("  s_add_u32 s49, s49, s51")
    A("  s_cmp_lt_u32 s59, 0x400000")
    A("  s_cbranch_scc1 L_poll2")
    A("L_got2:")
    A("  s_mov_b64 exec, -1")
    stamp(5)
    if stamps: A("  s_add_u32 s79, s59, 1")
    A("  v_permlane32_swap_b32 v8, v9")
    A("  v_add_f32 v8, v8, v9")
    A("  v_mov_b32 v9, v8")
    A("  s_nop 1")
    A("  v_permlane16_swap_b32 v8, v9")
    A("  v_add_f32 v8, v8, v9")
    for rot in (8, 4, 2):
        A("  s_nop 1")
        A(f"  v_add_f32_dpp v8, v8, v8 row_ror:{rot} row_mask:0xf bank_mask:0xf")
    A("  s_mov_b32 exec_lo, 3")
    A("  s_mov_b32 exec_hi, 3")
    A("  v_cvt_pk_bf16_f32 v15, v8, v8")
    A("  buffer_store_short v15, v14, s[20:23], s48 offen")
    A("  s_cmp_lg_u32 s50, 0")
    A("  s_cbranch_scc1 L_fin")
    A("  s_mov_b64 exec, 1")
    A("  v_mov_b32 v14, 0")
    A("  v_mov_b32 v15, s56")
    A("  buffer_store_dword v15, v14, s[28:31], s58 offen")
    A("  s_branch L_fin")
    A("L_p2:")
    WD = 48; PP = 80; H = 40; G0 = 112
    A("  s_sub_u32 s36, s32, 2                     ; j")
    if cpf:
        A("  s_getpc_b64 s[60:61]")
        A("L_pc:")
        A(f"  s_sub_u32 s60, s60, L_pc-{name}")
        A("  s_subb_u32 s61, s61, 0")
        A("  v_lshlrev_b32 v2, 7, v1")
        A(f"  v_min_u32 v2, L_end-{name}, v2")
        A("  s_cmp_lg_u32 s36, 0")
        A("  s_cbranch_scc1 L_nopf")
        A("  global_load_dword v47, v2, s[60:61]")
        A("L_nopf:")
    A(f"  s_mul_i32 s37, s33, {128*2048}")
    A("  s_lshl_b32 s38, s34, 8")
    A("  s_add_u32 s37, s37, s38")
    A("  s_lshl_b32 s38, s36, 6")
    A("  s_add_u32 s37, s37, s38")
    A("  v_lshrrev_b32 v3, 2, v1")
    A("  v_and_b32 v4, 3, v1")
    A("  v_lshlrev_b32 v2, 14, v3")
    A("  v_lshl_add_u32 v2, v4, 4, v2")
    A("  v_lshlrev_b32 v3, 4, v3")
    common_setup()
    A("  s_mul_i32 s52, s34, 28")
    A("  s_add_u32 s52, s52, s33")
    A("  s_lshl_b32 s52, s52, 10")
    A("  s_lshl_b32 s46, s36, 8")
    A("  s_add_u32 s52, s52, s46")
    A(f"  s_add_u32 s53, s52, {MB2B}")
    A(f"  s_add_u32 s52, s52, {MB2}")
    A("  s_add_u32 s46, s46, s44")
    A("  s_add_u32 s47, s46, 4096                  ; u partials")
    A("  v_lshrrev_b32 v5, 4, v1")
    A("  v_lshlrev_b32 v5, 10, v5")
    A("  v_and_b32 v12, 15, v1")
    A("  v_lshl_add_u32 v5, v12, 4, v5")
    A("  v_lshl_add_u32 v12, v12, 1, v7")
    A("  s_lshl_b32 s48, s36, 5")
    A("  v_add_lshl_u32 v12, v12, s48, 1")
    c1 = -2.0 * math.log2(math.e) * math.sqrt(2.0 / math.pi); c2 = c1 * 0.044715
    A(f"  v_mov_b32 v10, {f2u(c1):#x}")
    A("  v_mov_b32 v8, 0")
    A("  s_mov_b32 s62, 0x000f000f")
    A("  s_mov_b32 s63, 0x000f000f")
    A("  s_mov_b32 s59, 0")
    A("  s_waitcnt lgkmcnt(0)")
    A("  s_load_dword s40, s[28:29], s57")
    A("  s_load_dword s56, s[28:29], s58")
    if warm: A("  buffer_load_dword v46, v4, s[28:31], s52 offen sc1")
    A("  s_waitcnt lgkmcnt(0)")
    A("  s_barrier                                 ; B1")
    def dl(i):
        A(f"  buffer_load_dwordx4 v[{WD+4*i}:{WD+4*i+3}], v2, s[16:19], s37 offen offset:{(i&1)*2048}")
        if i & 1 and i < 7: A("  s_add_u32 s37, s37, 4096")
    for i in range(ND): dl(i)
    stamp(1)
    A("  s_add_u32 s40, s40, 1")
    A("  s_add_u32 s56, s56, 1")
    A(f"  v_mov_b32 v{R+1}, s56")
    A(f"  v_mov_b32 v{R+3}, s56")
    A("  v_mov_b32 v9, s40")
    def perms(p):
        a, b = WD + 8*p, WD + 8*p + 4
        for q in range(4):
            A(f"  v_perm_b32 v{PP+8*p+2*q}, v{b+q}, v{a+q}, s41")
            A(f"  v_perm_b32 v{PP+8*p+2*q+1}, v{b+q}, v{a+q}, s42")
    def gl():
        A(f"  buffer_load_dwordx4 v[{G0}:{G0+3}], v5, s[28:31], s46 offen sc1")
        A(f"  buffer_load_dwordx4 v[{G0+4}:{G0+7}], v5, s[28:31], s47 offen sc1")
    if eg == 0:
        di = ND
        for p in range(3):
            A(f"  s_waitcnt vmcnt({di-2*p-2})")
            if di < 8:
                dl(di); dl(di+1); di += 2
            perms(p)
        if prio: A(f"  s_setprio {prio}")
        A("  s_waitcnt vmcnt(0)")
        stamp(2)
        A("  s_barrier                                 ; B2")
        gl()
        perms(3)
        A("  s_branch L_chk1")
    elif eg == 1:
        di = ND
        for p in range(3):
            A(f"  s_waitcnt vmcnt({di-2*p-2})")
            if di < 8:
                dl(di); dl(di+1); di += 2
            if p < 2: perms(p)
        stamp(2)
        A("  s_barrier                                 ; B2")
        gl()
        perms(2)
        A("  s_waitcnt vmcnt(2)")
        perms(3)
        A("  s_branch L_chk1")
    else:
        assert ND == 4
        A("  s_waitcnt vmcnt(2)"); dl(4); dl(5); perms(0)
        A("  s_waitcnt vmcnt(2)")
        stamp(2)
        A("  s_barrier                                 ; B2")
        gl(); dl(6); dl(7)
        perms(1)
        A("  s_waitcnt vmcnt(4)")
        perms(2)
        A("  s_add_u32 s59, s59, 1")
        A("  s_waitcnt vmcnt(2)")
        A(f"  v_xor_b32 v32, s40, v{G0+1}")
        A(f"  v_xor_b32 v33, s40, v{G0+3}")
        A("  s_branch L_chk1b")
    A("L_poll1:")
    gl()
    A("L_chk1:")
    A("  s_add_u32 s59, s59, 1")
    A("  s_waitcnt vmcnt(1)")
    A(f"  v_xor_b32 v32, s40, v{G0+1}")
    A(f"  v_xor_b32 v33, s40, v{G0+3}")
    A("  s_waitcnt vmcnt(0)")
    A("L_chk1b:")
    A(f"  v_xor_b32 v34, s40, v{G0+5}")
    A(f"  v_xor_b32 v35, s40, v{G0+7}")
    A("  v_or3_b32 v15, v32, v33, v34")
    A("  v_or_b32 v15, v15, v35")
    A("  v_cmp_ne_u32 vcc, 0, v15")
    A("  s_and_b64 exec, vcc, vcc")
    A("  s_cbranch_scc0 L_got1")
    A("  s_cmp_lt_u32 s59, 0x400000")
    A("  s_cbranch_scc1 L_poll1")
    A("L_got1:")
    A("  s_mov_b64 exec, -1")
    stamp(3)
    if stamps: A("  s_mov_b32 s78, s59")
    A(f"  v_permlane32_swap_b32 v{G0}, v{G0+2}")
    A(f"  v_permlane32_swap_b32 v{G0+4}, v{G0+6}")
    A(f"  v_add_f32 v32, v{G0}, v{G0+2}")
    A(f"  v_add_f32 v34, v{G0+4}, v{G0+6}")
    A("  v_mov_b32 v33, v32")
    A("  v_mov_b32 v35, v34")
    A("  s_nop 0")
    A("  v_permlane16_swap_b32 v32, v33")
    A("  v_permlane16_swap_b32 v34, v35")
    A("  v_add_f32 v32, v32, v33")
    A("  v_add_f32 v34, v34, v35")
    A("  v_cvt_pk_bf16_f32 v32, v32, v34")
    A("  v_lshlrev_b32 v36, 16, v32")
    A("  v_and_b32 v34, 0xffff0000, v32")
    A("  v_mul_f32 v15, v36, v36")
    A(f"  v_fmac_f32 v10, {f2u(c2):#x}, v15")
    A("  v_mul_f32 v10, v10, v36")
    A("  v_exp_f32 v10, v10")
    A("  s_nop 0")
    A("  v_add_f32 v10, 1.0, v10")
    A("  v_rcp_f32 v10, v10")
    A("  s_nop 0")
    A("  v_mul_f32 v10, v10, v36")
    A("  v_cvt_pk_bf16_f32 v10, v10, v10")
    A("  v_lshlrev_b32 v10, 16, v10")
    A("  v_mul_f32 v10, v10, v34")
    A("  v_cvt_pk_bf16_f32 v10, v10, v10")
    A("  ds_write_b16 v12, v10")
    A("  s_waitcnt lgkmcnt(0)")
    A("  s_barrier                                 ; B3")
    A(f"  ds_read_b128 v[{H}:{H+3}], v3")
    if eg == 2:
        A("  s_waitcnt vmcnt(0)")
        perms(3)
    A("  s_waitcnt lgkmcnt(0)")
    for p in range(4):
        for t in range(8):
            A(f"  v_dot2c_f32_bf16 v{ACC+t}, v{PP+8*p+t}, v{H+p}")
    reduce([8, 4])
    A(f"  buffer_store_dwordx4 v[{R}:{R+3}], v4, s[28:31], s52 offen")
    if not nob: A(f"  buffer_store_dwordx4 v[{R}:{R+3}], v4, s[28:31], s53 offen sc1")
    stamp(4)
    A("  s_lshl_b32 s51, s34, 2")
    A("  s_add_u32 s51, s51, s36")
    A("  s_cmp_lg_u32 s51, 0")
    A("  s_cbranch_scc1 L_fin")
    A("  s_mov_b64 exec, 1")
    A("  buffer_store_dword v9, v8, s[28:31], s57 offen sc1")
    A("L_fin:")
    if stamps:
        stamp(6)
        A("  s_waitcnt lgkmcnt(0)")
        A("  s_mul_i32 s35, s2, 6")
        A("  s_add_u32 s35, s35, s32")
        A("  s_lshl_b32 s35, s35, 6")
        A(f"  s_add_u32 s35, s35, {STO}")
        A("  s_mov_b64 exec, 1")
        for k in range(16): A(f"  v_mov_b32 v{128+k}, s{64+k}")
        A("  v_mov_b32 v15, 0")
        for k in range(4): A(f"  buffer_store_dwordx4 v[{128+4*k}:{131+4*k}], v15, s[28:31], s35 offen offset:{16*k}")
    A("L_end:")
    A("  s_endpgm")
    nv = max(W0 + 4*NB, 120, 144 if stamps else 0)
    A('.section .rodata,"a"'); A(".p2align 6"); A(f".amdhsa_kernel {name}")
    A(f"  .amdhsa_next_free_vgpr {nv}")
    A(f"  .amdhsa_next_free_sgpr {80 if stamps else 64}")
    A(f"  .amdhsa_accum_offset {nv}")
    A("  .amdhsa_group_segment_fixed_size 0")
    A("  .amdhsa_kernarg_size 56")
    A("  .amdhsa_user_sgpr_count 2")
    A("  .amdhsa_user_sgpr_kernarg_segment_ptr 1")
    A("  .amdhsa_system_sgpr_workgroup_id_x 1")
    A("  .amdhsa_float_denorm_mode_32 3")
    A(".end_amdhsa_kernel")
    return "\n".join(o) + "\n"

if __name__ == "__main__":
    ap = argparse.ArgumentParser()
    for k, d in dict(stamps=0, dly=6, K2=2, st2=1, NA=80, cmap=0, mm=1, b1=32, NB=32, ND=8, cpf=0, nob=0, prio=0, warm=0, al=0, p1prio=0, thr=0, eg=0, b1p=-1).items():
        ap.add_argument("--"+k, type=int, default=d)
    ap.add_argument("-o", default="-")
    a = vars(ap.parse_args()); out = a.pop("o")
    s = gen(**a)
    if out == "-": sys.stdout.write(s)
    else: open(out, "w").write(s)
```

```python
import sys, argparse, math, struct
f2u = lambda f: struct.unpack("<I", struct.pack("<f", f))[0]

def gen(stamps=0, name="standalone__glu_gated_geglu__decode_kernel", dly=6, K2=2, st2=1, NA=80, cmap=0, mm=1, b1=32, NB=32, ND=8, cpf=0, nob=0, prio=0, warm=0, al=0, p1prio=0, thr=0, eg=0, b1p=-1, dw=0, dwg=0):
    D, DF = 1024, 3584
    N, T = 224, 384
    S = 1024
    E1, E2 = 0, 28*128
    MB2 = 8192; MB2B = MB2 + 224*S; MB1 = MB2B + 224*S; WSB = MB1 + 224*S
    STO = 2 << 20
    o = []; A = o.append
    for line in """GEGLU decode:  out = (gelu_tanh(x@Wg) * (x@Wu)) @ Wd      (bf16 in/out, fp32 accumulate)   -- one launch
workgroup (c = id>>3, k = id&7), c = 128-wide f tile (28), k = 0..7; 6 waves:
  waves 0-1: partial of g (k even) or u (k odd) for f tile c over rows d = (k>>1)*256..+255 -> hand-off 1 (group c, 8 workgroups)
             afterwards some of them reduce the output partials of slice k
  waves 2-5: prefetch w_down rows of f tile c x columns k*128..+127 into registers; gather the 4+4 partials,
             h = bf16(bf16(gelu(bf16 g)) * bf16 u) -> LDS; w_down tile . h -> hand-off 2 (slice k, 28 workgroups)
hand-offs go through d_ws as 16-byte granules {f32, tag, f32, tag}; tag = epoch word + 1 (epoch words live in d_ws and only
tell this launch's granules from older contents; they are advanced once every reader has read them).
hand-off 1: sc1 stores + sc1 loads.  hand-off 2: copy A (plain store, seen at once by workgroups behind the same L2) and
copy B (sc1 store, seen under any placement); a reducer that does not see copy A falls back to copy B.""".split("\n"):
        A("; " + line)
    A(f"; @launch grid=({N},1,1) block=({T},1,1) lds=256")
    A('.amdgcn_target "amdgcn-amd-amdhsa--gfx950"')
    A(".text"); A(f".globl {name}"); A(".p2align 8"); A(f".type {name},@function"); A(f"{name}:")
    A(f"  s_cmp_ge_u32 s2, {N}")
    A("  s_cbranch_scc1 L_end")
    for i, r, nm in [(1,8,"w_gate"),(2,12,"w_up"),(0,4,"x"),(3,16,"w_down"),(6,28,"ws"),(4,20,"out")]:
        A(f"  s_load_dwordx2 s[{r}:{r+1}], s[0:1], {i*8}        ; {nm}")
    def stamp(i):
        if stamps: A(f"  s_memrealtime s[{64+2*i}:{65+2*i}]")
    if stamps:
        for i in range(16): A(f"  s_mov_b32 s{64+i}, 0")
    stamp(0)
    for r, sz in [(4,2048),(8,D*DF*2),(12,D*DF*2),(16,D*DF*2),(20,2048),(28,(STO + (1<<20)) if stamps else WSB)]:
        A(f"  s_mov_b32 s{r+2}, {sz}")
        A(f"  s_mov_b32 s{r+3}, 0x00020000")
    A("  v_readfirstlane_b32 s32, v0")
    A("  v_and_b32 v1, 63, v0                      ; lane")
    if cmap == 0:
        A("  s_and_b32 s34, s2, 7                      ; k")
        A("  s_lshr_b32 s33, s2, 3                     ; c")
    else:
        A(f"  s_mov_b32 s35, {(1<<32)//28+1}")
        A("  s_mul_hi_u32 s34, s2, s35")
        A("  s_mul_i32 s35, s34, 28")
        A("  s_sub_u32 s33, s2, s35")
    A("  s_lshr_b32 s32, s32, 6                    ; wave")
    A("  s_lshl_b32 s57, s33, 7")
    A("  s_lshl_b32 s58, s34, 7")
    A(f"  s_add_u32 s58, s58, {E2}")
    A("  s_cmp_ge_u32 s32, 2")
    A("  s_cbranch_scc1 L_p2")
    ACC = 16; R = 24

    def common_setup():
        A("  s_mov_b32 s41, 0x05040100")
        A("  s_mov_b32 s42, 0x07060302")
        A("  v_bfe_u32 v6, v1, 4, 1")
        A("  v_lshrrev_b32 v7, 5, v1")
        for t in range(8): A(f"  v_mov_b32 v{ACC+t}, 0")
        A("  v_lshlrev_b32 v4, 6, v4")
        A("  v_lshl_add_u32 v4, v7, 5, v4")
        A("  v_lshl_add_u32 v4, v6, 4, v4")
        A(f"  s_lshl_b32 s44, s33, 13")
        A(f"  s_add_u32 s44, s44, {MB1}")

    def reduce(dpps):
        A("  s_nop 0")
        for t in range(4): A(f"  v_permlane32_swap_b32 v{ACC+t}, v{ACC+4+t}")
        for t in range(4): A(f"  v_add_f32 v{ACC+t}, v{ACC+t}, v{ACC+4+t}")
        A("  s_nop 0")
        for t in range(2): A(f"  v_permlane16_swap_b32 v{ACC+t}, v{ACC+2+t}")
        for t in range(2): A(f"  v_add_f32 v{ACC+t}, v{ACC+t}, v{ACC+2+t}")
        for n, rot in enumerate(dpps):
            last = n == len(dpps) - 1
            A("  s_nop 0")
            for t in range(2):
                dst = (R + 2*t) if last else ACC + t
                A(f"  v_add_f32_dpp v{dst}, v{ACC+t}, v{ACC+t} row_ror:{rot} row_mask:0xf bank_mask:0xf")
        A("  s_mov_b64 exec, s[62:63]")

    W0 = 56; XR = 40; TP = 32
    if mm == 0:
        A("  s_and_b32 s38, s34, 3                     ; k4")
        A("  s_lshr_b32 s39, s34, 2                    ; m")
    else:
        A("  s_lshr_b32 s38, s34, 1                    ; k4")
        A("  s_and_b32 s39, s34, 1                     ; m")
    A(f"  s_mul_i32 s37, s38, {256*7168}")
    A("  s_lshl_b32 s43, s33, 8")
    A("  s_add_u32 s37, s37, s43")
    A("  s_lshl_b32 s43, s32, 7")
    A("  s_add_u32 s37, s37, s43")
    A("  v_lshrrev_b32 v3, 3, v1")
    A("  v_and_b32 v4, 7, v1")
    A(f"  v_mul_u32_u24 v2, {32*7168}, v3")
    A("  v_lshl_add_u32 v2, v4, 4, v2")
    A("  v_lshlrev_b32 v3, 6, v3")
    A("  s_lshl_b32 s43, s38, 9")
    if p1prio: A(f"  s_setprio {p1prio}")
    A("  s_cmp_lg_u32 s39, 0")
    A("  s_waitcnt lgkmcnt(0)")
    A("  s_cselect_b32 s8, s12, s8")
    A("  s_cselect_b32 s9, s13, s9")
    for q in range(4):
        A(f"  buffer_load_dwordx4 v[{XR+4*q}:{XR+4*q+3}], v3, s[4:7], s43 offen offset:{16*q}")
    def wl(i):
        r = W0 + 4*(i % NB)
        A(f"  buffer_load_dwordx4 v[{r}:{r+3}], v2, s[8:11], s37 offen")
        if i < 31: A("  s_add_u32 s37, s37, 7168")
    def bar1():
        stamp(1)
        A("  s_waitcnt lgkmcnt(0)")
        A("  s_barrier")
    if thr:
        A("  s_and_b32 s55, s33, 3")
        A("  s_cmp_eq_u32 s55, 1")
        A("  s_cselect_b32 s55, 1, 0")
    def throttle(tag):
        A("  s_cmp_eq_u32 s55, 1")
        A(f"  s_cbranch_scc1 L_th{tag}")
        A(f"  s_waitcnt vmcnt({thr-2})")
        A(f"L_th{tag}:")
    for i in range(NB):
        if thr and i >= thr and i % 2 == 0: throttle(f"a{i}")
        wl(i)
        if i == 1:
            A("  s_load_dword s40, s[28:29], s57")
            A("  s_load_dword s56, s[28:29], s58")
    if NB == 32: bar1()
    else: A("  s_waitcnt lgkmcnt(0)")
    common_setup()
    A("  s_lshl_b32 s45, s39, 2")
    A("  s_add_u32 s45, s45, s38")
    A("  s_lshl_b32 s45, s45, 10")
    A("  s_add_u32 s45, s45, s44")
    A("  s_lshl_b32 s46, s32, 9")
    A("  s_add_u32 s45, s45, s46")
    A("  s_mul_i32 s50, s32, 28")
    A("  s_add_u32 s50, s50, s33")
    A(f"  s_mul_i32 s49, s34, {28*S}")
    A("  s_lshl_b32 s51, s50, 5")
    A("  s_add_u32 s49, s49, s51")
    A(f"  s_add_u32 s49, s49, {MB2}")
    A("  v_lshrrev_b32 v13, 1, v1")
    A("  v_and_b32 v14, 1, v1")
    A("  v_lshlrev_b32 v13, 10, v13")
    A("  v_lshl_add_u32 v13, v14, 4, v13")
    A("  v_lshl_add_u32 v14, v14, 1, v7")
    A("  v_lshlrev_b32 v14, 1, v14")
    A("  s_lshl_b32 s48, s34, 8")
    A("  s_lshl_b32 s51, s50, 3")
    A("  s_add_u32 s48, s48, s51")
    A("  v_mov_b32 v8, 0")
    A("  v_mov_b32 v9, 0")
    A("  s_add_u32 s40, s40, 1                     ; tag 1")
    A("  s_add_u32 s56, s56, 1                     ; tag 2")
    A(f"  v_mov_b32 v{R+1}, s40")
    A(f"  v_mov_b32 v{R+3}, s40")
    A("  s_mov_b32 s62, 0x00ff00ff")
    A("  s_mov_b32 s63, 0x00ff00ff")
    issued = NB
    for p in range(16):
        A(f"  s_waitcnt vmcnt({issued - 2*p - 2})")
        if al: A("  .p2align 3")
        a, b = W0 + 4*((2*p) % NB), W0 + 4*((2*p+1) % NB)
        for q in range(4):
            A(f"  v_perm_b32 v{TP+2*q}, v{b+q}, v{a+q}, s41")
            A(f"  v_perm_b32 v{TP+2*q+1}, v{b+q}, v{a+q}, s42")
        if issued < 32:
            if thr: throttle(f"b{p}")
            wl(issued); wl(issued + 1); issued += 2
            if issued == 32 and b1p < 0: bar1()
        if p == b1p: bar1()
        for t in range(8):
            A(f"  v_dot2c_f32_bf16 v{ACC+t}, v{TP+t}, v{XR+p}")
    stamp(2)
    reduce([8])
    A(f"  buffer_store_dwordx4 v[{R}:{R+3}], v4, s[28:31], s45 offen sc1")
    A("  s_mov_b64 exec, -1")
    A("  s_barrier")
    A("  s_barrier")
    stamp(4)
    A("  s_cmp_ge_u32 s50, 32")
    A("  s_cbranch_scc1 L_fin")
    M0 = 64
    A("  s_mov_b32 s59, 0")
    A("  s_mov_b32 exec_hi, 0x00ffffff")
    def issue(s): A(f"  buffer_load_dwordx4 v[{M0+4*s}:{M0+4*s+3}], v13, s[28:31], s49 offen sc1")
    for s in range(K2-1):
        issue(s)
        if st2: A(f"  s_sleep {st2}")
    A("L_poll2:")
    for s in range(K2):
        issue((s + K2 - 1) % K2)
        r = M0 + 4*s
        A(f"  s_waitcnt vmcnt({K2-1})")
        A(f"  v_cmp_ne_u32 vcc, s56, v{r+1}")
        A(f"  v_cmp_ne_u32 s[60:61], s56, v{r+3}")
        A(f"  v_mov_b32 v8, v{r}")
        A(f"  v_mov_b32 v9, v{r+2}")
        A("  s_or_b64 exec, s[60:61], vcc")
        A("  s_cbranch_scc0 L_got2")
    A("  s_add_u32 s59, s59, 1")
    A(f"  s_cmp_eq_u32 s59, {NA // K2}")
    A(f"  s_cselect_b32 s51, {MB2B - MB2}, 0")
    A("  s_add_u32 s49, s49, s51")
    A("  s_cmp_lt_u32 s59, 0x400000")
    A("  s_cbranch_scc1 L_poll2")
    A("L_got2:")
    A("  s_mov_b64 exec, -1")
    stamp(5)
    if stamps: A("  s_add_u32 s79, s59, 1")
    A("  v_permlane32_swap_b32 v8, v9")
    A("  v_add_f32 v8, v8, v9")
    A("  v_mov_b32 v9, v8")
    A("  s_nop 1")
    A("  v_permlane16_swap_b32 v8, v9")
    A("  v_add_f32 v8, v8, v9")
    for rot in (8, 4, 2):
        A("  s_nop 1")
        A(f"  v_add_f32_dpp v8, v8, v8 row_ror:{rot} row_mask:0xf bank_mask:0xf")
    A("  s_mov_b32 exec_lo, 3")
    A("  s_mov_b32 exec_hi, 3")
    A("  v_cvt_pk_bf16_f32 v15, v8, v8")
    A("  buffer_store_short v15, v14, s[20:23], s48 offen")
    A("  s_cmp_lg_u32 s50, 0")
    A("  s_cbranch_scc1 L_fin")
    A("  s_mov_b64 exec, 1")
    A("  v_mov_b32 v14, 0")
    A("  v_mov_b32 v15, s56")
    A("  buffer_store_dword v15, v14, s[28:31], s58 offen")
    A("  s_branch L_fin")
    A("L_p2:")
    WD = 48; PP = 80; H = 40; G0 = 112
    A("  s_sub_u32 s36, s32, 2                     ; j")
    if cpf:
        A("  s_getpc_b64 s[60:61]")
        A("L_pc:")
        A(f"  s_sub_u32 s60, s60, L_pc-{name}")
        A("  s_subb_u32 s61, s61, 0")
        A("  v_lshlrev_b32 v2, 7, v1")
        A(f"  v_min_u32 v2, L_end-{name}, v2")
        A("  s_cmp_lg_u32 s36, 0")
        A("  s_cbranch_scc1 L_nopf")
        A("  global_load_dword v47, v2, s[60:61]")
        A("L_nopf:")
    A(f"  s_mul_i32 s37, s33, {128*2048}")
    A("  s_lshl_b32 s38, s34, 8")
    A("  s_add_u32 s37, s37, s38")
    A("  s_lshl_b32 s38, s36, 6")
    A("  s_add_u32 s37, s37, s38")
    A("  v_lshrrev_b32 v3, 2, v1")
    A("  v_and_b32 v4, 3, v1")
    A("  v_lshlrev_b32 v2, 14, v3")
    A("  v_lshl_add_u32 v2, v4, 4, v2")
    A("  v_lshlrev_b32 v3, 4, v3")
    common_setup()
    A("  s_mul_i32 s52, s34, 28")
    A("  s_add_u32 s52, s52, s33")
    A("  s_lshl_b32 s52, s52, 10")
    A("  s_lshl_b32 s46, s36, 8")
    A("  s_add_u32 s52, s52, s46")
    A(f"  s_add_u32 s53, s52, {MB2B}")
    A(f"  s_add_u32 s52, s52, {MB2}")
    A("  s_add_u32 s46, s46, s44")
    A("  s_add_u32 s47, s46, 4096                  ; u partials")
    A("  v_lshrrev_b32 v5, 4, v1")
    A("  v_lshlrev_b32 v5, 10, v5")
    A("  v_and_b32 v12, 15, v1")
    A("  v_lshl_add_u32 v5, v12, 4, v5")
    A("  v_lshl_add_u32 v12, v12, 1, v7")
    A("  s_lshl_b32 s48, s36, 5")
    A("  v_add_lshl_u32 v12, v12, s48, 1")
    c1 = -2.0 * math.log2(math.e) * math.sqrt(2.0 / math.pi); c2 = c1 * 0.044715
    A(f"  v_mov_b32 v10, {f2u(c1):#x}")
    A("  v_mov_b32 v8, 0")
    A("  s_mov_b32 s62, 0x000f000f")
    A("  s_mov_b32 s63, 0x000f000f")
    A("  s_mov_b32 s59, 0")
    A("  s_waitcnt lgkmcnt(0)")
    A("  s_load_dword s40, s[28:29], s57")
    A("  s_load_dword s56, s[28:29], s58")
    if warm: A("  buffer_load_dword v46, v4, s[28:31], s52 offen sc1")
    A("  s_waitcnt lgkmcnt(0)")
    A("  s_barrier                                 ; B1")
    def dl(i):
        A(f"  buffer_load_dwordx4 v[{WD+4*i}:{WD+4*i+3}], v2, s[16:19], s37 offen offset:{(i&1)*2048}")
        if i & 1 and i < 7: A("  s_add_u32 s37, s37, 4096")
    for i in range(ND): dl(i)
    stamp(1)
    A("  s_add_u32 s40, s40, 1")
    A("  s_add_u32 s56, s56, 1")
    A(f"  v_mov_b32 v{R+1}, s56")
    A(f"  v_mov_b32 v{R+3}, s56")
    A("  v_mov_b32 v9, s40")
    def perms(p):
        a, b = WD + 8*p, WD + 8*p + 4
        for q in range(4):
            A(f"  v_perm_b32 v{PP+8*p+2*q}, v{b+q}, v{a+q}, s41")
            A(f"  v_perm_b32 v{PP+8*p+2*q+1}, v{b+q}, v{a+q}, s42")
    def gl():
        A(f"  buffer_load_dwordx4 v[{G0}:{G0+3}], v5, s[28:31], s46 offen sc1")
        A(f"  buffer_load_dwordx4 v[{G0+4}:{G0+7}], v5, s[28:31], s47 offen sc1")
    if eg == 0:
        di = ND
        for p in range(3):
            A(f"  s_waitcnt vmcnt({di-2*p-2})")
            if di < 8:
                dl(di); dl(di+1); di += 2
            perms(p)
        if prio: A(f"  s_setprio {prio}")
        A("  s_waitcnt vmcnt(0)")
        stamp(2)
        A("  s_barrier                                 ; B2")
        gl()
        perms(3)
        A("  s_branch L_chk1")
    elif eg == 1:
        di = ND
        for p in range(3):
            A(f"  s_waitcnt vmcnt({di-2*p-2})")
            if di < 8:
                dl(di); dl(di+1); di += 2
            if p < 2: perms(p)
        stamp(2)
        A("  s_barrier                                 ; B2")
        gl()
        perms(2)
        A("  s_waitcnt vmcnt(2)")
        perms(3)
        A("  s_branch L_chk1")
    else:
        assert ND == 4
        A("  s_waitcnt vmcnt(2)"); dl(4); dl(5); perms(0)
        A("  s_waitcnt vmcnt(2)")
        stamp(2)
        A("  s_barrier                                 ; B2")
        gl(); dl(6); dl(7)
        perms(1)
        A("  s_waitcnt vmcnt(4)")
        perms(2)
        A("  s_add_u32 s59, s59, 1")
        A("  s_waitcnt vmcnt(2)")
        A(f"  v_xor_b32 v32, s40, v{G0+1}")
        A(f"  v_xor_b32 v33, s40, v{G0+3}")
        A("  s_branch L_chk1b")
    A("L_poll1:")
    gl()
    A("L_chk1:")
    A("  s_add_u32 s59, s59, 1")
    A("  s_waitcnt vmcnt(1)")
    A(f"  v_xor_b32 v32, s40, v{G0+1}")
    A(f"  v_xor_b32 v33, s40, v{G0+3}")
    A("  s_waitcnt vmcnt(0)")
    A("L_chk1b:")
    A(f"  v_xor_b32 v34, s40, v{G0+5}")
    A(f"  v_xor_b32 v35, s40, v{G0+7}")
    A("  v_or3_b32 v15, v32, v33, v34")
    A("  v_or_b32 v15, v15, v35")
    A("  v_cmp_ne_u32 vcc, 0, v15")
    A("  s_and_b64 exec, vcc, vcc")
    A("  s_cbranch_scc0 L_got1")
    A("  s_cmp_lt_u32 s59, 0x400000")
    A("  s_cbranch_scc1 L_poll1")
    A("L_got1:")
    A("  s_mov_b64 exec, -1")
    stamp(3)
    if stamps: A("  s_mov_b32 s78, s59")
    A(f"  v_permlane32_swap_b32 v{G0}, v{G0+2}")
    A(f"  v_permlane32_swap_b32 v{G0+4}, v{G0+6}")
    A(f"  v_add_f32 v32, v{G0}, v{G0+2}")
    A(f"  v_add_f32 v34, v{G0+4}, v{G0+6}")
    A("  v_mov_b32 v33, v32")
    A("  v_mov_b32 v35, v34")
    A("  s_nop 0")
    A("  v_permlane16_swap_b32 v32, v33")
    A("  v_permlane16_swap_b32 v34, v35")
    A("  v_add_f32 v32, v32, v33")
    A("  v_add_f32 v34, v34, v35")
    A("  v_cvt_pk_bf16_f32 v32, v32, v34")
    A("  v_lshlrev_b32 v36, 16, v32")
    A("  v_and_b32 v34, 0xffff0000, v32")
    A("  v_mul_f32 v15, v36, v36")
    A(f"  v_fmac_f32 v10, {f2u(c2):#x}, v15")
    A("  v_mul_f32 v10, v10, v36")
    A("  v_exp_f32 v10, v10")
    A("  s_nop 0")
    A("  v_add_f32 v10, 1.0, v10")
    A("  v_rcp_f32 v10, v10")
    A("  s_nop 0")
    A("  v_mul_f32 v10, v10, v36")
    A("  v_cvt_pk_bf16_f32 v10, v10, v10")
    A("  v_lshlrev_b32 v10, 16, v10")
    A("  v_mul_f32 v10, v10, v34")
    A("  v_cvt_pk_bf16_f32 v10, v10, v10")
    A("  ds_write_b16 v12, v10")
    A("  s_waitcnt lgkmcnt(0)")
    A("  s_barrier                                 ; B3")
    A(f"  ds_read_b128 v[{H}:{H+3}], v3")
    if eg == 2:
        A("  s_waitcnt vmcnt(0)")
        perms(3)
    A("  s_waitcnt lgkmcnt(0)")
    for p in range(4):
        for t in range(8):
            A(f"  v_dot2c_f32_bf16 v{ACC+t}, v{PP+8*p+t}, v{H+p}")
    reduce([8, 4])
    A(f"  buffer_store_dwordx4 v[{R}:{R+3}], v4, s[28:31], s52 offen")
    if not nob: A(f"  buffer_store_dwordx4 v[{R}:{R+3}], v4, s[28:31], s53 offen sc1")
    stamp(4)
    A("  s_lshl_b32 s51, s34, 2")
    A("  s_add_u32 s51, s51, s36")
    A("  s_cmp_lg_u32 s51, 0")
    A("  s_cbranch_scc1 L_fin")
    A("  s_mov_b64 exec, 1")
    A("  buffer_store_dword v9, v8, s[28:31], s57 offen sc1")
    A("L_fin:")
    if stamps == 3:
        stamp(6)
        A("  s_waitcnt lgkmcnt(0)")
        A(f"  s_cmp_lg_u32 s32, {dw}")
        A("  s_cbranch_scc1 L_end")
        A(f"  s_cmp_lg_u32 s2, {dwg}")
        A("  s_cbranch_scc1 L_end")
        A(f"  s_sub_u32 s35, s{64+2*dly}, s64")
        A("  s_lshl_b32 s35, s35, 3")
        A("  s_add_u32 s35, s35, s64")
        A("  s_add_u32 s35, s35, 1000")
        A("L_dly:")
        A("  s_memrealtime s[60:61]")
        A("  s_waitcnt lgkmcnt(0)")
        A("  s_sub_u32 s62, s60, s35")
        A("  s_cmp_lt_i32 s62, 0")
        A("  s_cbranch_scc1 L_dly")
    elif stamps:
        stamp(6)
        A("  s_waitcnt lgkmcnt(0)")
        A("  s_mul_i32 s35, s2, 6")
        A("  s_add_u32 s35, s35, s32")
        A("  s_lshl_b32 s35, s35, 6")
        A(f"  s_add_u32 s35, s35, {STO}")
        A("  s_mov_b64 exec, 1")
        for k in range(16): A(f"  v_mov_b32 v{128+k}, s{64+k}")
        A("  v_mov_b32 v15, 0")
        for k in range(4): A(f"  buffer_store_dwordx4 v[{128+4*k}:{131+4*k}], v15, s[28:31], s35 offen offset:{16*k}")
    A("L_end:")
    A("  s_endpgm")
    nv = max(W0 + 4*NB, 120, 144 if stamps else 0)
    A('.section .rodata,"a"'); A(".p2align 6"); A(f".amdhsa_kernel {name}")
    A(f"  .amdhsa_next_free_vgpr {nv}")
    A(f"  .amdhsa_next_free_sgpr {80 if stamps else 64}")
    A(f"  .amdhsa_accum_offset {nv}")
    A("  .amdhsa_group_segment_fixed_size 0")
    A("  .amdhsa_kernarg_size 56")
    A("  .amdhsa_user_sgpr_count 2")
    A("  .amdhsa_user_sgpr_kernarg_segment_ptr 1")
    A("  .amdhsa_system_sgpr_workgroup_id_x 1")
    A("  .amdhsa_float_denorm_mode_32 3")
    A(".end_amdhsa_kernel")
    return "\n".join(o) + "\n"

if __name__ == "__main__":
    ap = argparse.ArgumentParser()
    for k, d in dict(stamps=0, dly=6, K2=2, st2=1, NA=80, cmap=0, mm=1, b1=32, NB=32, ND=8, cpf=0, nob=0, prio=0, warm=0, al=0, p1prio=0, thr=0, eg=0, b1p=-1, dw=0, dwg=0).items():
        ap.add_argument("--"+k, type=int, default=d)
    ap.add_argument("-o", default="-")
    a = vars(ap.parse_args()); out = a.pop("o")
    s = gen(**a)
    if out == "-": sys.stdout.write(s)
    else: open(out, "w").write(s)
```
